```python
import torch

def _softmax(x, axis=-1):
    return torch.softmax(x, dim=axis)
def _gelu(x):
    return torch.nn.functional.gelu(x, approximate="tanh")
def _silu(x):
    return torch.nn.functional.silu(x)
def _sigmoid(x):
    return torch.sigmoid(x)
def _layernorm(x, axis=-1, eps=1e-5):
    m = x.mean(dim=axis, keepdim=True)
    v = x.var(dim=axis, keepdim=True, unbiased=False)
    return (x - m) / torch.sqrt(v + eps)
def _scatter_add(tgt, idx, src, axis=0):
    return tgt.clone().index_add_(axis, idx, src)
def _segment_sum(src, seg, n):
    out = torch.zeros((n,) + src.shape[1:], dtype=src.dtype)
    return out.index_add_(0, seg, src)
def _pad(x, pw):
    flat = tuple(v for pair in reversed(pw) for v in pair)
    return torch.nn.functional.pad(x, flat)

kernel_name = 'standalone__gqa_softmax__sampling'

def setup_inputs():

    _w = (lambda a: (lambda t: t.to(torch.bfloat16) if t.is_floating_point() else t)(torch.as_tensor(a)))
    B, Hq, Hkv, Sq, Sk, D = 8, 32, 8, 16, 8192, 128
    return {
        "q": _w((lambda *s: torch.randn(*s, dtype=torch.bfloat16) * 0.8)(B, Hq, Sq, D)),
        "k": _w((lambda *s: torch.randn(*s, dtype=torch.bfloat16) * 0.8)(B, Hkv, Sk, D)),
        "v": _w((lambda *s: torch.randn(*s, dtype=torch.bfloat16) * 0.05)(B, Hkv, Sk, D)),
    }

def reference(q, k, v):
    B, Hq, Sq, D = q.shape
    Hkv = k.shape[1]
    rep = Hq // Hkv
    k = (lambda x, n, axis: torch.repeat_interleave(x, n, dim=axis))(k, rep, axis=1)
    v = (lambda x, n, axis: torch.repeat_interleave(x, n, dim=axis))(v, rep, axis=1)
    scale = D ** -0.5
    scores = torch.einsum("bhqd,bhkd->bhqk", q, k) * scale
    p = _softmax(scores, axis=-1)
    return torch.einsum("bhqk,bhkd->bhqd", p, v)
```

```python
import re

TRANS = ("v_exp_f32", "v_log_f32", "v_rcp_f32", "v_rsq_f32", "v_sqrt_f32", "v_sin_f32", "v_cos_f32")


def split_ops(s):
    out, depth, cur = [], 0, ""
    for ch in s:
        if ch == "[":
            depth += 1
        if ch == "]":
            depth -= 1
        if ch == "," and depth == 0:
            out.append(cur.strip())
            cur = ""
        else:
            cur += ch
    if cur.strip():
        out.append(cur.strip())
    return out


def regs_of(tok):
    tok = tok.strip()
    tok = tok.split()[0] if tok else tok
    tok = tok.lstrip("-")
    m = re.fullmatch(r"abs\((.*)\)", tok)
    if m:
        tok = m.group(1)
    m = re.fullmatch(r"([vsa])\[(\d+):(\d+)\]", tok)
    if m:
        return [(m.group(1), k) for k in range(int(m.group(2)), int(m.group(3)) + 1)]
    m = re.fullmatch(r"([vsa])(\d+)", tok)
    if m:
        return [(m.group(1), int(m.group(2)))]
    if tok == "vcc":
        return [("vcc", 0)]
    if tok == "m0":
        return [("m0", 0)]
    if tok == "exec":
        return [("exec", 0)]
    return []


class Ins:
    def __init__(self, text):
        self.text = text
        t = text.split(";")[0].strip()
        self.label = t.endswith(":")
        self.empty = (not t) or t.startswith(".")
        self.kind = None
        self.w = set()
        self.r = set()
        self.ws = 1
        self.mfma_a = set()
        self.mfma_c = set()
        self.name = ""
        if self.label or self.empty:
            self.ws = 0
            return
        parts = t.split(None, 1)
        name = parts[0]
        self.name = name
        ops = split_ops(parts[1]) if len(parts) > 1 else []
        R = lambda k: set(regs_of(ops[k])) if k < len(ops) else set()
        if name == "s_nop":
            self.kind = "nop"
            self.ws = int(ops[0]) + 1
        elif name.startswith("v_mfma"):
            self.kind = "mfma"
            self.passes = 8 if "32x32x16" in name else 4
            self.w = R(0)
            self.mfma_a = R(1) | R(2)
            self.mfma_c = R(3)
            self.r = self.mfma_a | self.mfma_c
        elif name.startswith("v_"):
            self.kind = "valu"
            self.trans = name.replace("_e32", "").replace("_e64", "") in TRANS
            if "permlane" in name and "swap" in name:
                self.w = R(0) | R(1)
                self.r = R(0) | R(1)
            elif name.startswith("v_add_co") or name.startswith("v_sub_co"):
                self.w = R(0) | R(1)
                self.r = set().union(*[R(k) for k in range(2, len(ops))])
            elif name.startswith("v_addc_co"):
                self.w = R(0) | R(1)
                self.r = set().union(*[R(k) for k in range(2, len(ops))])
            else:
                self.w = R(0)
                self.r = set().union(*[R(k) for k in range(1, len(ops))]) if len(ops) > 1 else set()
                if name.startswith("v_fmac") or name.startswith("v_pk_fmac") or name.startswith("v_writelane"):
                    self.r |= R(0)
                if name.startswith("v_cndmask") and len(ops) == 3:
                    self.r.add(("vcc", 0))
            if name.startswith("v_cmpx"):
                self.w.add(("exec", 0))
        elif name.startswith("ds_"):
            self.kind = "ds"
            if name.startswith("ds_read") or name.startswith("ds_bpermute") or name.startswith("ds_swizzle"):
                self.w = R(0)
                self.r = set().union(*[R(k) for k in range(1, len(ops))])
            else:
                self.r = set().union(*[R(k) for k in range(0, len(ops))])
        elif name.startswith("buffer_") or name.startswith("global_"):
            self.kind = "vmem"
            islds = bool(re.search(r"\blds\b", t)) or "load_lds" in name
            self.lds = islds
            if "load" in name and not islds:
                self.w = R(0)
                self.r = set().union(*[R(k) for k in range(1, len(ops))])
            else:
                self.r = set().union(*[R(k) for k in range(0, len(ops))])
                if "atomic" in name and re.search(r"\bsc0\b", t):
                    self.w = R(0)
            if islds:
                self.r.add(("m0", 0))
            self.wide_store = bool(re.search(r"store_dwordx[34]", name))
            if self.wide_store:
                self.store_data = R(0) if name.startswith("buffer_") else R(1)
        elif name.startswith("s_"):
            self.kind = "salu"
            if name.startswith(("s_cmp", "s_waitcnt", "s_barrier", "s_branch", "s_cbranch", "s_endpgm", "s_sleep",
                                "s_setprio", "s_bitcmp")):
                self.r = set().union(*[R(k) for k in range(len(ops))]) if ops else set()
            else:
                self.w = R(0)
                self.r = set().union(*[R(k) for k in range(1, len(ops))]) if len(ops) > 1 else set()
                if "saveexec" in name:
                    self.w.add(("exec", 0))
        else:
            raise ValueError("unknown instruction: " + text)


def need(p, c):
    n = 0
    vg = lambda s: {x for x in s if x[0] in ("v", "a")}
    sg = lambda s: {x for x in s if x[0] in ("s", "vcc")}
    if p.kind == "valu":
        pw = vg(p.w)
        if c.kind == "mfma" and pw & c.r:
            n = max(n, 2)
        if c.kind == "valu":
            if "permlane" in c.name and pw & c.r:
                n = max(n, 2)
            if ("readlane" in c.name or "readfirstlane" in c.name) and pw & c.r:
                n = max(n, 1)
            if "dpp" in c.text or "row_" in c.text or "quad_perm" in c.text:
                if pw & c.r:
                    n = max(n, 2)
            if p.trans and not c.trans and pw & (c.r | c.w):
                n = max(n, 1)
            if p.trans and c.trans and pw & c.r:
                n = max(n, 1)
            if sg(p.w) & c.r:
                n = max(n, 2)
                if "readlane" in c.name or "writelane" in c.name:
                    n = max(n, 4)
            if ("exec", 0) in p.w:
                n = max(n, 4)
        if c.kind == "mfma" and ("exec", 0) in p.w:
            n = max(n, 4)
        if c.kind == "vmem" and sg(p.w) & c.r:
            n = max(n, 5)
        if c.kind == "salu" and sg(p.w) & c.r:
            n = max(n, 4)
        if p.trans and c.kind in ("ds", "vmem") and pw & c.r:
            n = max(n, 1)
    if p.kind == "mfma":
        full = {4: 8, 8: 12}[p.passes]
        if c.kind == "mfma":
            if p.w & c.mfma_a:
                n = max(n, full)
            if p.w & c.mfma_c:
                if p.w == c.mfma_c and c.passes == p.passes:
                    pass
                else:
                    n = max(n, {4: 6, 8: 10}[p.passes])
            elif p.w & c.w:
                n = max(n, full)
        elif c.kind == "valu":
            if p.w & (c.r | c.w):
                n = max(n, full)
            if p.mfma_c & c.w:
                n = max(n, {4: 3, 8: 7}[p.passes])
        elif c.kind in ("ds", "vmem"):
            if p.w & (c.r | c.w):
                n = max(n, full)
    if p.kind == "salu":
        if ("m0", 0) in p.w and c.kind == "vmem" and getattr(c, "lds", False):
            n = max(n, 1)
        if ("exec", 0) in p.w and c.kind == "valu" and ("dpp" in c.text or "row_" in c.text):
            n = max(n, 5)
    if p.kind == "vmem" and getattr(p, "wide_store", False):
        if c.kind == "valu" and p.store_data & c.w:
            n = max(n, 2)
        elif c.kind in ("ds", "vmem", "mfma") and p.store_data & c.w:
            n = max(n, 1)
    return n


class Asm:
    def __init__(self):
        self.lines = []

    def __call__(self, text):
        for ln in text.split("\n"):
            if ln.strip():
                self.lines.append(ln.strip())

    def label(self, name):
        self.lines.append(name + ":")

    def comment(self, t):
        self.lines.append("; " + t)


def pad_hazards(lines, loops=()):
    ins = []
    nadd = 0
    for ln in lines:
        c = Ins(ln) if not ln.startswith(";") else Ins("")
        c.text_full = ln
        if c.kind is not None:
            req = 0
            dist = 0
            for p in reversed(ins):
                if p.kind is not None:
                    nd = need(p, c)
                    if nd - dist > req:
                        req = nd - dist
                dist += p.ws
                if dist > 24:
                    break
            while req > 0:
                k = min(req, 16)
                nop = Ins("s_nop %d" % (k - 1))
                nop.text_full = "s_nop %d" % (k - 1)
                ins.append(nop)
                nadd += 1
                req -= k
        ins.append(c)
    for head, tail in loops:
        hi = next(k for k, x in enumerate(ins) if x.text_full == head + ":")
        ti = next(k for k, x in enumerate(ins) if x.text_full.startswith(tail))
        body = ins[hi:ti + 1]
        seq = body + body
        for j in range(len(body), len(seq)):
            c = seq[j]
            if c.kind is None:
                continue
            dist = 0
            for k in range(j - 1, -1, -1):
                p = seq[k]
                if p.kind is not None and need(p, c) > dist:
                    raise RuntimeError("back-edge hazard: %s -> %s (dist %d)" % (p.text_full, c.text_full, dist))
                dist += p.ws
                if dist > 24:
                    break
    return [x.text_full for x in ins], nadd
```

```python
import argparse, math, struct
from asmlib import Asm, pad_hazards

NAME = "standalone__gqa_softmax__sampling"


def vr(b, n=1):
    return "v%d" % b if n == 1 else "v[%d:%d]" % (b, b + n - 1)


def sr(b, n=1):
    return "s%d" % b if n == 1 else "s[%d:%d]" % (b, b + n - 1)


class DS:
    def __init__(self, a):
        self.a = a
        self.q = []
        self.done = 0

    def issue(self, text, tag):
        self.a(text)
        self.q.append(tag)

    def need(self, tags):
        idx = max(i for i, t in enumerate(self.q) if t in tags)
        if idx < self.done:
            return
        n = min(len(self.q) - 1 - idx, 14)
        self.a("s_waitcnt lgkmcnt(%d)" % n)
        self.done = len(self.q) - n

    def reset(self):
        assert self.done == len(self.q), (self.done, len(self.q))
        self.q = []
        self.done = 0


def gen(N=4, pol="nt", wgmap=1, inter=1, diag=0, nocompute=0, pk=0, thr=256.0, DIST=7, polv=None):
    a = Asm()
    assert N in (2, 4)
    U = 16384
    KBASE, VBASE = 0, N * U
    LDS = 2 * N * U
    VM = 8 * (N - 2)
    sQ, sK, sV, sOut, sDbg, sWs = 4, 6, 8, 10, 12, 14
    srdK, srdV, srdQ, srdW, srdO, srdD = 16, 20, 24, 28, 32, 36
    sW, sGrp, sSpl, sT = 40, 41, 42, 43
    sOffK, sOffV, sM0K, sM0V = 44, 45, 46, 47
    sDK, sDV, sC, sTmp, sTmp2, sThr = 48, 49, 50, 52, 53, 54
    sSlot, sLimK, sLimV, sW4 = 55, 56, 57, 58
    sDNeg, sDPos = 59, 63
    vKoff, vVoff, vKa, vVa = 8, 12, 14, 18
    vMC, vL, vAl = 26, 28, 29
    vT = 30
    vDg1, vDg2 = 38, 39
    vQ, vS, vP, vO, vK, vV, vX = 40, 56, 72, 80, 112, 176, 240
    WSLOT = 9216
    cscale = (128 ** -0.5) * math.log2(math.e)
    f2u = lambda x: struct.unpack("<I", struct.pack("<f", x))[0]
    tstride = 65536 if inter else 16384
    polk = (" " + pol) if pol else ""
    polv_ = polk if polv is None else ((" " + polv) if polv else "")

    def stamp_real(idx):
        a("s_memrealtime s[%d:%d]" % (64 + 2 * idx, 65 + 2 * idx))

    def stamp_tile():
        a("s_add_u32 s62, %s, 63" % sr(sT))
        a("s_lshl_b64 exec, 1, s62")
        a("v_mov_b32 %s, s60" % vr(vDg1))
        a("s_mov_b64 exec, -1")
        a("s_memtime s[60:61]")

    def dma_k():
        for n in range(4):
            a("buffer_load_dwordx4 %s, %s, %s offen offset:%d%s lds" % (vr(vKoff + n), sr(srdK, 4), sr(sOffK), n * 1024, polk))

    def dma_v():
        for n in range(4):
            a("buffer_load_dwordx4 %s, %s, %s offen offset:%d%s lds" % (vr(vVoff + (n & 1)), sr(srdV, 4), sr(sOffV), n * 1024, polv_))

    a("s_cmp_ge_u32 s2, 256")
    a("s_cbranch_scc1 L_done")
    a("s_load_dwordx8 s[4:11], s[0:1], 0")
    a("s_load_dwordx4 s[12:15], s[0:1], 32")
    if diag:
        stamp_real(0)
    a("v_lshrrev_b32 v1, 6, v0")
    a("v_and_b32 v0, 63, v0")
    a("v_readfirstlane_b32 %s, v1" % sr(sW))
    a("v_and_b32 v2, 15, v0")
    a("v_lshrrev_b32 v3, 4, v0")
    a("v_xor_b32 v4, v2, v3")
    a("v_lshlrev_b32 v4, 4, v4")
    a("v_lshlrev_b32 v5, 12, v1")
    a("v_lshl_or_b32 v5, v3, 8, v5")
    a("v_or_b32 %s, v5, v4" % vr(vKoff))
    for n in range(1, 4):
        a("v_xor_b32 %s, %d, %s" % (vr(vKoff + n), n << 6, vr(vKoff)))
    a("v_lshlrev_b32 v6, 1, v3")
    a("v_xor_b32 v6, v6, v2")
    a("v_lshl_or_b32 %s, v6, 4, v5" % vr(vVoff))
    a("v_xor_b32 %s, 0x80, %s" % (vr(vVoff + 1), vr(vVoff)))
    a("v_lshlrev_b32 v6, 12, v1")
    a("v_lshl_or_b32 v6, v2, 8, v6")
    a("v_lshl_or_b32 v7, v3, 4, v6")
    if wgmap == 1:
        a("s_and_b32 %s, s2, 63" % sr(sGrp))
        a("s_lshr_b32 %s, s2, 6" % sr(sSpl))
    else:
        a("s_lshr_b32 %s, s2, 2" % sr(sGrp))
        a("s_and_b32 %s, s2, 3" % sr(sSpl))
    a("s_lshl_b32 %s, %s, 21" % (sr(sTmp), sr(sGrp)))
    a("s_lshl_b32 %s, %s, %d" % (sr(sTmp2), sr(sSpl), 14 if inter else 19))
    a("s_add_u32 %s, %s, %s" % (sr(sTmp), sr(sTmp), sr(sTmp2)))
    if inter:
        a("s_sub_u32 %s, 0x200000, %s" % (sr(srdK + 2), sr(sTmp2)))
    else:
        a("s_mov_b32 %s, 0x80000" % sr(srdK + 2))
    a("s_mov_b32 %s, %s" % (sr(srdV + 2), sr(srdK + 2)))
    a("s_mov_b32 %s, 0x20000" % sr(srdK + 3))
    a("s_mov_b32 %s, 0x20000" % sr(srdV + 3))
    a("s_mov_b32 %s, 0x20000" % sr(srdQ + 3))
    a("s_mov_b32 %s, 0x100000" % sr(srdQ + 2))
    a("s_lshl_b32 %s, %s, 14" % (sr(sTmp2), sr(sGrp)))
    a("s_lshl_b32 %s, %s, 12" % (sr(sW4), sr(sW)))
    a("s_mov_b32 %s, %s" % (sr(sM0K), sr(sW4)))
    a("s_add_u32 %s, %s, %d" % (sr(sM0V), sr(sW4), (N - 1) * U))
    a("s_mov_b32 %s, 0" % sr(sOffK))
    a("s_mov_b32 %s, 0x40000000" % sr(sOffV))
    a("s_mov_b32 %s, %d" % (sr(sT), N - 1))
    a("s_waitcnt lgkmcnt(0)")
    if diag:
        stamp_real(1)
    a("s_add_u32 %s, %s, %s" % (sr(srdK), sr(sK), sr(sTmp)))
    a("s_addc_u32 %s, %s, 0" % (sr(srdK + 1), sr(sK + 1)))
    a("s_add_u32 %s, %s, %s" % (sr(srdV), sr(sV), sr(sTmp)))
    a("s_addc_u32 %s, %s, 0" % (sr(srdV + 1), sr(sV + 1)))
    a("s_mov_b32 %s, %s" % (sr(srdQ), sr(sQ)))
    a("s_mov_b32 %s, %s" % (sr(srdQ + 1), sr(sQ + 1)))
    for j in range(4):
        a("buffer_load_dwordx4 %s, v7, %s, %s offen offset:%d" % (vr(vQ + 4 * j, 4), sr(srdQ, 4), sr(sTmp2), j * 64))

    RMASK = N * U - 1

    def refill_v():
        a("s_or_b32 m0, %s, 0x%x" % (sr(sM0V), VBASE))
        a("s_mov_b32 %s, %s" % (sr(sM0V), sr(sM0K)))
        dma_v()

    def refill_k():
        a("s_mov_b32 m0, %s" % sr(sM0K))
        a("s_mov_b32 %s, %s" % (sr(sOffV), sr(sOffK)))
        dma_k()
        a("s_add_u32 %s, %s, %d" % (sr(sM0K), sr(sM0K), U))
        a("s_add_u32 %s, %s, %d" % (sr(sOffK), sr(sOffK), tstride))
        a("s_and_b32 %s, %s, 0x%x" % (sr(sM0K), sr(sM0K), RMASK))

    a.label("L_fill")
    refill_v()
    refill_k()
    a("s_sub_u32 %s, %s, 1" % (sr(sT), sr(sT)))
    a("s_cmp_lg_u32 %s, 0" % sr(sT))
    a("s_cbranch_scc1 L_fill")
    if diag:
        stamp_real(2)
    a("v_lshlrev_b32 v6, 8, v2")
    a("v_or_b32 %s, v6, v4" % vr(vKa))
    for j in range(1, 4):
        a("v_xor_b32 %s, %d, %s" % (vr(vKa + j), j << 6, vr(vKa)))
    a("v_lshrrev_b32 v5, 2, v2")
    a("v_lshl_or_b32 v5, v3, 2, v5")
    a("v_and_b32 v6, 7, v5")
    a("v_lshlrev_b32 v6, 5, v6")
    a("v_lshl_or_b32 v6, v5, 8, v6")
    a("v_and_b32 v5, 3, v2")
    a("v_lshl_or_b32 v6, v5, 3, v6")
    for db in range(8):
        a("v_xor_b32 v5, %d, v6" % (db << 5))
        a("v_add_u32 %s, %d, v5" % (vr(vVa + db), VBASE + (N - 1) * U))
    for k in range(32):
        a("v_mov_b32 %s, 0" % vr(vO + k))
    for k in range(8):
        a("v_mov_b32 %s, 0" % vr(vP + k))
    a("v_mov_b32 %s, 0xff800000" % vr(vMC))
    a("v_mov_b32 %s, 0" % vr(vL))
    a("s_mov_b32 %s, 0x%08x" % (sr(sC), f2u(cscale)))
    a("s_mov_b32 %s, 0x%08x" % (sr(sC + 1), f2u(cscale)))
    a("s_mov_b32 %s, 0x%08x" % (sr(sThr), f2u(thr)))
    a("s_mov_b32 %s, 0" % sr(sT))
    a("s_mov_b32 %s, %d" % (sr(sDNeg), -(N - 1) * U))
    a("s_mov_b32 %s, %d" % (sr(sDPos), U))
    a("s_mov_b32 %s, %d" % (sr(sDV), -(N - 1) * U))
    a("s_mov_b32 %s, %s" % (sr(srdW), sr(sWs)))
    a("s_mov_b32 %s, %s" % (sr(srdW + 1), sr(sWs + 1)))
    a("s_mov_b32 %s, 0x%x" % (sr(srdW + 2), (32 << 20) if diag else 1024 * WSLOT))
    a("s_mov_b32 %s, 0x20000" % sr(srdW + 3))
    a("s_mov_b32 %s, %s" % (sr(srdO), sr(sOut)))
    a("s_mov_b32 %s, %s" % (sr(srdO + 1), sr(sOut + 1)))
    a("s_mov_b32 %s, 0x100000" % sr(srdO + 2))
    a("s_mov_b32 %s, 0x20000" % sr(srdO + 3))
    a("s_mov_b32 %s, %s" % (sr(srdD), sr(sDbg)))
    a("s_mov_b32 %s, %s" % (sr(srdD + 1), sr(sDbg + 1)))
    a("s_mov_b32 %s, 256" % sr(srdD + 2))
    a("s_mov_b32 %s, 0x20000" % sr(srdD + 3))
    if diag:
        a("v_mov_b32 %s, 0" % vr(vDg1))
        a("v_mov_b32 %s, 0" % vr(vDg2))
        a("s_mov_b32 s60, 0")
        stamp_real(3)

    ds = DS(a)
    S = lambda k: vr(vS + k)
    X = lambda k: vr(vX + k)
    t = lambda k: vr(vT + k)

    def kread(kb):
        for j in range(4):
            ds.issue("ds_read_b128 %s, %s offset:%d" % (vr(vK + 16 * kb + 4 * j, 4), vr(vKa + j), kb * 4096), ("K", kb, j))

    def qk1(kb, j):
        ds.need([("K", kb, j)])
        a("v_mfma_f32_16x16x32_bf16 %s, %s, %s, %s" % (vr(vS + 4 * kb, 4), vr(vK + 16 * kb + 4 * j, 4), vr(vQ + 4 * j, 4),
                                                     "0" if j == 0 else vr(vS + 4 * kb, 4)))

    def vread(db, s):
        b = vV + 8 * db + 4 * s
        ds.issue("ds_read_b64_tr_b16 %s, %s offset:%d" % (vr(b, 2), vr(vVa + db), (2 * s) * 4096), ("V", db, s, 0))
        ds.issue("ds_read_b64_tr_b16 %s, %s offset:%d" % (vr(b + 2, 2), vr(vVa + db), (2 * s + 1) * 4096), ("V", db, s, 1))

    def pv1(db, s):
        ds.need([("V", db, s, 1)])
        a("v_mfma_f32_16x16x32_bf16 %s, %s, %s, %s" % (vr(vO + 4 * db, 4), vr(vV + 8 * db + 4 * s, 4), vr(vP + 4 * s, 4), vr(vO + 4 * db, 4)))

    def sm_fma(k):
        a("v_fma_f32 %s, %s, %s, -%s" % (X(k), S(k), sr(sC), vr(vMC)))

    def sm_exp(k):
        a("v_exp_f32 %s, %s" % (X(k), X(k)))

    def cvt(k):
        a("v_cvt_pk_bf16_f32 %s, %s, %s" % (vr(vP + k), X(2 * k), X(2 * k + 1)))

    a.label("L_loop")
    a("s_waitcnt vmcnt(%d)" % VM)
    a("s_barrier")
    if diag:
        stamp_tile()
        a("s_cmp_lg_u32 %s, 0" % sr(sT))
        a("s_cbranch_scc1 L_nost")
        stamp_real(4)
        a.label("L_nost")
    a("s_add_u32 %s, %s, 1" % (sr(sT), sr(sT)))
    if nocompute:
        refill_v()
        refill_k()
    else:
        units = [("K", 0, j) for j in range(4)] + [("K", 1, j) for j in range(4)] + [("V", db, 0) for db in range(8)] + \
                [("K", 2, j) for j in range(4)] + [("K", 3, j) for j in range(4)] + [("V", db, 1) for db in range(8)]

        def issue(u):
            if u >= 32:
                return
            kind, x, y = units[u]
            if kind == "K":
                ds.issue("ds_read_b128 %s, %s offset:%d" % (vr(vK + 16 * x + 4 * y, 4), vr(vKa + y), x * 4096), ("K", x, y))
            else:
                vread(x, y)

        def tag(u):
            kind, x, y = units[u]
            return ("K", x, y) if kind == "K" else ("V", x, y, 1)

        def mfma(u):
            kind, x, y = units[u]
            if u % 2 == 0:
                ds.need([tag(u + 1)])
            if kind == "K":
                qk1(x, y)
            else:
                pv1(x, y)

        def padd(d, x, y):
            a("v_add_f32 %s, %s, %s" % (d, x, y))

        def pk_fma(k):
            a("v_pk_fma_f32 %s, %s, %s, %s op_sel_hi:[1,0,0] neg_lo:[0,0,1] neg_hi:[0,0,1]" % (vr(vX + k, 2), vr(vS + k, 2), sr(sC, 2), vr(vMC, 2)))

        def pk_add(d, x, y):
            a("v_pk_add_f32 %s, %s, %s" % (vr(d, 2), vr(x, 2), vr(y, 2)))

        D = DIST
        for u in range(D):
            issue(u)
        refill_v()
        a("s_and_b32 %s, %s, %d" % (sr(sTmp), sr(sT), N - 1))
        a("s_cselect_b32 %s, %s, %s" % (sr(sDK), sr(sDPos), sr(sDNeg)))
        fill = {i: [] for i in range(33)}
        F = lambda i, fn, *args: fill[i].append((fn, args))
        for h, base in ((0, 8), (1, 24)):
            k0 = 8 * h
            if pk:
                for m in range(4):
                    F(base + 2 * m, pk_fma, k0 + 2 * m)
                    F(base + 2 * m + 1, sm_exp, k0 + 2 * m)
                    F(min(base + 2 * m + 2, base + 8), sm_exp, k0 + 2 * m + 1)
            else:
                for m in range(8):
                    F(base + m, sm_fma, k0 + m)
                    F(base + m + 1, sm_exp, k0 + m)
        T0 = vT
        if pk:
            F(17, pk_add, T0, vX + 0, vX + 2)
            F(18, pk_add, T0 + 2, vX + 4, vX + 6)
            F(19, cvt, 0); F(19, cvt, 1)
            F(20, cvt, 2); F(20, cvt, 3)
            F(21, pk_add, T0, T0, T0 + 2)
        else:
            F(17, padd, t(0), X(0), X(1)); F(17, padd, t(1), X(2), X(3))
            F(18, padd, t(2), X(4), X(5)); F(18, padd, t(3), X(6), X(7))
            F(19, cvt, 0); F(19, cvt, 1)
            F(20, cvt, 2); F(20, cvt, 3)
            F(21, padd, t(0), t(0), t(1)); F(21, padd, t(2), t(2), t(3))
            F(22, padd, t(0), t(0), t(2))
        def kadd(j):
            a("v_add_u32 %s, %s, %s" % (vr(vKa + j), sr(sDK), vr(vKa + j)))
        def vadd(db):
            a("v_add_u32 %s, %s, %s" % (vr(vVa + db), sr(sDV), vr(vVa + db)))
        lastK = max(u for u in range(32) if units[u][0] == "K") - D
        for j in range(4):
            F(lastK + 1 + j // 2, kadd, j)
        for db in range(8):
            F(24 - D + db + 1 if 24 - D + db + 1 <= 32 else 32, vadd, db)
        F(2, refill_k)
        for u in range(32):
            mfma(u)
            issue(u + D)
            for fn, args in fill[u]:
                fn(*args)
        for fn, args in fill[32]:
            fn(*args)
        if pk:
            pk_add(T0 + 2, vX + 8, vX + 10)
            pk_add(T0 + 4, vX + 12, vX + 14)
            cvt(4); cvt(5)
            pk_add(T0, T0, T0 + 2)
            cvt(6)
            pk_add(T0, T0, T0 + 4)
            cvt(7)
            padd(t(0), t(0), t(1))
        else:
            padd(t(1), X(8), X(9))
            padd(t(2), X(10), X(11))
            padd(t(3), X(12), X(13))
            cvt(4); cvt(5)
            padd(t(4), X(14), X(15))
            padd(t(0), t(0), t(1))
            padd(t(2), t(2), t(3))
            cvt(6)
            padd(t(0), t(0), t(4))
            cvt(7)
            padd(t(0), t(0), t(2))
        a("v_cmp_nge_f32 vcc, %s, %s" % (sr(sThr), t(0)))
        a("s_mov_b32 %s, %s" % (sr(sDV), sr(sDK)))
        a("s_cbranch_vccnz L_slow")
        a.label("L_back")
        a("v_add_f32 %s, %s, %s" % (vr(vL), vr(vL), t(0)))
        ds.reset()
    a("s_cmp_lt_u32 %s, 32" % sr(sT))
    a("s_cbranch_scc1 L_loop")

    a("s_waitcnt vmcnt(%d)" % (VM + 4))
    a("s_barrier")
    if not nocompute:
        for db in range(3):
            vread(db, 0); vread(db, 1)
        for db in range(8):
            pv1(db, 0); pv1(db, 1)
            if db + 3 < 8:
                vread(db + 3, 0); vread(db + 3, 1)
        ds.reset()

    if diag:
        stamp_real(5)
        a("s_add_u32 s62, %s, 63" % sr(sT))
        a("s_lshl_b64 exec, 1, s62")
        a("v_mov_b32 %s, s60" % vr(vDg1))
        a("s_mov_b64 exec, -1")
    a("v_mov_b32 %s, %s" % (t(1), vr(vL)))
    a("v_permlane32_swap_b32 %s, %s" % (t(1), vr(vL)))
    a("v_add_f32 %s, %s, %s" % (vr(vL), vr(vL), t(1)))
    a("v_mov_b32 %s, %s" % (t(1), vr(vL)))
    a("v_permlane16_swap_b32 %s, %s" % (t(1), vr(vL)))
    a("v_add_f32 %s, %s, %s" % (t(1), vr(vL), t(1)))
    a("v_mov_b32 %s, %s" % (t(0), vr(vMC)))
    a("s_lshl_b32 %s, %s, 2" % (sr(sTmp), sr(sGrp)))
    a("s_add_u32 %s, %s, %s" % (sr(sTmp2), sr(sTmp), sr(sW)))
    a("s_lshl_b32 %s, %s, 2" % (sr(sTmp2), sr(sTmp2)))
    a("s_add_u32 %s, %s, %s" % (sr(sTmp2), sr(sTmp2), sr(sSpl)))
    a("s_mul_i32 %s, %s, %d" % (sr(sOffK), sr(sTmp2), WSLOT))
    a("s_add_u32 %s, %s, 4096" % (sr(sOffV), sr(sOffK)))
    a("s_add_u32 %s, %s, 8192" % (sr(sM0K), sr(sOffK)))
    a("v_lshlrev_b32 v1, 4, v0")
    a("v_lshlrev_b32 v2, 3, v0")
    for n in range(8):
        a("buffer_store_dwordx4 %s, v1, %s, %s offen offset:%d sc1" % (vr(vO + 4 * n, 4), sr(srdW, 4), sr(sOffK if n < 4 else sOffV), (n & 3) * 1024))
    a("buffer_store_dwordx2 %s, v2, %s, %s offen sc1" % (vr(vT, 2), sr(srdW, 4), sr(sM0K)))
    a("s_add_u32 %s, %s, %s" % (sr(sTmp2), sr(sTmp), sr(sSpl)))
    a("s_mul_i32 %s, %s, %d" % (sr(sTmp2), sr(sTmp2), 4 * WSLOT))
    a("s_lshl_b32 %s, %s, 11" % (sr(sTmp), sr(sW)))
    a("v_add_u32 v3, %s, v1" % sr(sTmp))
    a("v_add_u32 v4, 8192, v2")
    a("s_waitcnt vmcnt(0)")
    a("s_barrier")
    if diag:
        stamp_real(6)
    a("s_cmp_lg_u32 %s, 0" % sr(sW))
    a("s_cbranch_scc1 L_wait")
    a("s_lshl_b32 %s, %s, 2" % (sr(sTmp), sr(sGrp)))
    a("s_mov_b64 exec, 1")
    a("v_mov_b32 v5, 1")
    a("v_mov_b32 v6, %s" % sr(sTmp))
    a("s_mov_b32 %s, 0" % sr(sT))
    a("buffer_atomic_add v5, v6, %s, 0 offen" % sr(srdD, 4))
    a.label("L_poll")
    a("buffer_load_dword v5, v6, %s, 0 offen sc1" % sr(srdD, 4))
    a("s_add_u32 %s, %s, 1" % (sr(sT), sr(sT)))
    a("s_waitcnt vmcnt(0)")
    a("v_readfirstlane_b32 %s, v5" % sr(sTmp))
    a("s_cmp_ge_u32 %s, 0x20000" % sr(sT))
    a("s_cbranch_scc1 L_polled")
    a("s_cmp_lt_u32 %s, 4" % sr(sTmp))
    a("s_cbranch_scc1 L_poll")
    a.label("L_polled")
    a("s_mov_b64 exec, -1")
    a.label("L_wait")
    a("s_barrier")
    if diag:
        stamp_real(7)
    G = vK
    for src in range(4):
        a("s_add_u32 %s, %s, %d" % (sr(44 + src), sr(sTmp2), src * WSLOT))
    for src in range(4):
        a("buffer_load_dwordx2 %s, v4, %s, %s offen sc1" % (vr(vV + 2 * src, 2), sr(srdW, 4), sr(44 + src)))
    for src in range(4):
        for e in range(2):
            a("buffer_load_dwordx4 %s, v3, %s, %s offen offset:%d sc1" % (vr(G + 8 * src + 4 * e, 4), sr(srdW, 4), sr(44 + src), e * 1024))
    a("v_and_b32 v5, 15, v0")
    a("v_lshrrev_b32 v6, 4, v0")
    a("v_lshlrev_b32 v5, 8, v5")
    a("v_lshl_or_b32 v5, v6, 3, v5")
    a("s_lshl_b32 %s, %s, 6" % (sr(sTmp), sr(sW)))
    a("v_add_u32 v5, %s, v5" % sr(sTmp))
    a("s_lshl_b32 %s, %s, 14" % (sr(sTmp), sr(sGrp)))
    a("s_lshl_b32 %s, %s, 12" % (sr(sTmp2), sr(sSpl)))
    a("s_add_u32 %s, %s, %s" % (sr(sTmp), sr(sTmp), sr(sTmp2)))
    a("s_waitcnt vmcnt(8)")
    mm = lambda s: vr(vV + 2 * s)
    ll = lambda s: vr(vV + 2 * s + 1)
    a("v_max3_f32 %s, %s, %s, %s" % (t(0), mm(0), mm(1), mm(2)))
    a("v_max_f32 %s, %s, %s" % (t(0), t(0), mm(3)))
    for s in range(4):
        a("v_sub_f32 %s, %s, %s" % (mm(s), mm(s), t(0)))
    for s in range(4):
        a("v_exp_f32 %s, %s" % (mm(s), mm(s)))
    a("v_mul_f32 %s, %s, %s" % (t(1), mm(0), ll(0)))
    for s in range(1, 4):
        a("v_fma_f32 %s, %s, %s, %s" % (t(1), mm(s), ll(s), t(1)))
    a("v_rcp_f32 %s, %s" % (t(1), t(1)))
    for s in range(4):
        a("v_mul_f32 %s, %s, %s" % (mm(s), mm(s), t(1)))
    a("s_waitcnt vmcnt(0)")
    for k in range(8):
        a("v_mul_f32 %s, %s, %s" % (vr(vS + k), mm(0), vr(G + k)))
    for s in range(1, 4):
        for k in range(8):
            a("v_fma_f32 %s, %s, %s, %s" % (vr(vS + k), mm(s), vr(G + 8 * s + k), vr(vS + k)))
    for k in range(4):
        a("v_cvt_pk_bf16_f32 %s, %s, %s" % (vr(vP + k), vr(vS + 2 * k), vr(vS + 2 * k + 1)))
    for e in range(2):
        a("buffer_store_dwordx2 %s, v5, %s, %s offen offset:%d" % (vr(vP + 2 * e, 2), sr(srdO, 4), sr(sTmp), e * 32))
    if diag:
        stamp_real(8)
        a("s_waitcnt lgkmcnt(0)")
        for idx in range(9):
            a("s_lshl_b64 exec, 1, %d" % idx)
            a("v_mov_b32 %s, s%d" % (vr(vDg2), 64 + 2 * idx))
        a("s_getreg_b32 s60, hwreg(HW_REG_XCC_ID)")
        a("s_lshl_b64 exec, 1, 14")
        a("v_mov_b32 %s, s60" % vr(vDg2))
        a("s_getreg_b32 s60, hwreg(HW_REG_HW_ID)")
        a("s_lshl_b64 exec, 1, 15")
        a("v_mov_b32 %s, s60" % vr(vDg2))
        a("s_mov_b64 exec, -1")
        a("s_lshl_b32 s60, s2, 2")
        a("s_add_u32 s60, s60, %s" % sr(sW))
        a("s_lshl_b32 s60, s60, 9")
        a("s_add_u32 s60, s60, 0x1000000")
        a("v_lshlrev_b32 v1, 2, v0")
        a("buffer_store_dword %s, v1, %s, s60 offen" % (vr(vDg1), sr(srdW, 4)))
        a("buffer_store_dword %s, v1, %s, s60 offen offset:256" % (vr(vDg2), sr(srdW, 4)))
    a.label("L_done")
    a("s_endpgm")

    if not nocompute:
        a.label("L_slow")
        a("s_nop 7")
        a("v_max3_f32 %s, %s, %s, %s" % (t(0), S(0), S(1), S(2)))
        a("v_max3_f32 %s, %s, %s, %s" % (t(1), S(3), S(4), S(5)))
        a("v_max3_f32 %s, %s, %s, %s" % (t(2), S(6), S(7), S(8)))
        a("v_max3_f32 %s, %s, %s, %s" % (t(0), t(0), S(9), S(10)))
        a("v_max3_f32 %s, %s, %s, %s" % (t(1), t(1), S(11), S(12)))
        a("v_max3_f32 %s, %s, %s, %s" % (t(2), t(2), S(13), S(14)))
        a("v_max3_f32 %s, %s, %s, %s" % (t(0), t(0), t(1), S(15)))
        a("v_max_f32 %s, %s, %s" % (t(0), t(0), t(2)))
        a("v_mov_b32 %s, %s" % (t(1), t(0)))
        a("v_permlane32_swap_b32 %s, %s" % (t(1), t(0)))
        a("v_max_f32 %s, %s, %s" % (t(0), t(0), t(1)))
        a("v_mov_b32 %s, %s" % (t(1), t(0)))
        a("v_permlane16_swap_b32 %s, %s" % (t(1), t(0)))
        a("v_max_f32 %s, %s, %s" % (t(0), t(0), t(1)))
        a("v_mul_f32 %s, %s, %s" % (t(0), sr(sC), t(0)))
        a("v_max_f32 %s, %s, %s" % (t(0), t(0), vr(vMC)))
        a("v_sub_f32 %s, %s, %s" % (t(1), vr(vMC), t(0)))
        a("v_mov_b32 %s, %s" % (vr(vMC), t(0)))
        a("v_exp_f32 %s, %s" % (vr(vAl), t(1)))
        for k in range(16):
            sm_fma(k)
        for k in range(16):
            sm_exp(k)
        a("v_mul_f32 %s, %s, %s" % (vr(vL), vr(vAl), vr(vL)))
        for k in range(32):
            a("v_mul_f32 %s, %s, %s" % (vr(vO + k), vr(vAl), vr(vO + k)))
        a("v_add_f32 %s, %s, %s" % (t(0), X(0), X(1)))
        for k in range(2, 16):
            a("v_add_f32 %s, %s, %s" % (t(0), t(0), X(k)))
        for k in range(8):
            cvt(k)
        a("s_branch L_back")

    loops = [("L_loop", "s_cbranch_scc1 L_loop"), ("L_poll", "s_cbranch_scc1 L_poll"), ("L_fill", "s_cbranch_scc1 L_fill")]
    body, nadd = pad_hazards(a.lines, loops=loops)
    out = []
    out.append("; params: N=%d pol=%r wgmap=%d inter=%d diag=%d nocompute=%d" % (N, pol, wgmap, inter, diag, nocompute))
    out.append("; @launch grid=(256,1,1) block=(256,1,1) lds=%d" % LDS)
    out.append('.amdgcn_target "amdgcn-amd-amdhsa--gfx950"')
    out.append(".text")
    out.append(".globl %s_kernel" % NAME)
    out.append(".p2align 8")
    out.append(".type %s_kernel,@function" % NAME)
    out.append("%s_kernel:" % NAME)
    for ln in body:
        out.append(ln if ln.endswith(":") else "    " + ln)
    out.append('.section .rodata,"a"')
    out.append(".p2align 6")
    out.append(".amdhsa_kernel %s_kernel" % NAME)
    out.append("  .amdhsa_next_free_vgpr 256")
    out.append("  .amdhsa_next_free_sgpr 96")
    out.append("  .amdhsa_accum_offset 256")
    out.append("  .amdhsa_group_segment_fixed_size 0")
    out.append("  .amdhsa_kernarg_size 48")
    out.append("  .amdhsa_user_sgpr_count 2")
    out.append("  .amdhsa_user_sgpr_kernarg_segment_ptr 1")
    out.append("  .amdhsa_system_sgpr_workgroup_id_x 1")
    out.append(".end_amdhsa_kernel")
    return "\n".join(out) + "\n", nadd


if __name__ == "__main__":
    ap = argparse.ArgumentParser()
    ap.add_argument("-o", default="cdna_kernels/%s.s" % NAME)
    ap.add_argument("--N", type=int, default=4)
    ap.add_argument("--pol", default="nt")
    ap.add_argument("--wgmap", type=int, default=1)
    ap.add_argument("--inter", type=int, default=1)
    ap.add_argument("--diag", type=int, default=0)
    ap.add_argument("--nocompute", type=int, default=0)
    ap.add_argument("--pk", type=int, default=0)
    ap.add_argument("--polv", default=None)
    ap.add_argument("--dist", type=int, default=7)
    args = ap.parse_args()
    txt, nadd = gen(N=args.N, pol=args.pol, wgmap=args.wgmap, inter=args.inter, diag=args.diag, nocompute=args.nocompute, pk=args.pk, DIST=args.dist, polv=args.polv)
    open(args.o, "w").write(txt)
    print("wrote", args.o, "nops inserted:", nadd, "lines:", txt.count("\n"))
```

```python
import argparse, math, struct
from asmlib import Asm, pad_hazards

NAME = "standalone__gqa_softmax__sampling"


def vr(b, n=1):
    return "v%d" % b if n == 1 else "v[%d:%d]" % (b, b + n - 1)


def sr(b, n=1):
    return "s%d" % b if n == 1 else "s[%d:%d]" % (b, b + n - 1)


class DS:
    def __init__(self, a):
        self.a = a
        self.q = []
        self.done = 0

    def issue(self, text, tag):
        self.a(text)
        self.q.append(tag)

    def need(self, tags):
        idx = max(i for i, t in enumerate(self.q) if t in tags)
        if idx < self.done:
            return
        n = min(len(self.q) - 1 - idx, 14)
        self.a("s_waitcnt lgkmcnt(%d)" % n)
        self.done = len(self.q) - n

    def reset(self):
        assert self.done == len(self.q), (self.done, len(self.q))
        self.q = []
        self.done = 0


def gen(N=4, pol="nt", wgmap=2, diag=0, nocompute=0, thr=256.0, DIST=7, polv=None, dyn=1, S=20, kslot=2, pollall=0):
    a = Asm()
    assert N == 4
    if not dyn:
        S = 32
    POOL = 128 - 4 * S
    D0 = 11 if not dyn else min(11, S - 9)
    assert D0 >= 5
    U = 16384
    KBASE, VBASE = 0, N * U
    LDSQ = 2 * N * U
    LDS = 2 * N * U + 64
    VM = 8 * (N - 2)
    sQ, sK, sV, sOut, sDbg, sWs = 4, 6, 8, 10, 12, 14
    srdK, srdV, srdQ, srdW, srdO, srdD = 16, 20, 24, 28, 32, 36
    sW, sGrp, sSpl, sT = 40, 41, 42, 43
    sOffK, sOffV, sM0K, sM0V = 44, 45, 46, 47
    sDK, sDV, sC, sTmp, sTmp2, sThr = 48, 49, 50, 52, 53, 54
    sW4 = 58
    sDNeg, sDPos = 59, 63
    sEvt, sTag, sEnd, sDyn, sR, sInit, sStat, sDynBase, sCtl, sDbgOff, sJ = 82, 83, 84, 85, 86, 87, 88, 89, 90, 91, 92
    vC, vLq, vR, vH, vPair = 1, 3, 4, 27, 6
    vKoff, vVoff, vKa, vVa = 8, 12, 14, 18
    vMC, vL, vAl = 26, 28, 29
    vT = 30
    vDg1, vDg2 = 38, 39
    vQ, vS, vP, vO, vK, vV, vX = 40, 56, 72, 80, 112, 176, 240
    WSLOT = 12288
    CTL_OFF = 12 << 20
    cscale = (128 ** -0.5) * math.log2(math.e)
    f2u = lambda x: struct.unpack("<I", struct.pack("<f", x))[0]
    tstride = 65536
    polk = (" " + pol) if pol else ""
    polv_ = polk if polv is None else ((" " + polv) if polv else "")

    def stamp_real(idx):
        a("s_memrealtime s[%d:%d]" % (64 + 2 * idx, 65 + 2 * idx))

    def stamp_tile():
        a("s_add_u32 s62, %s, 63" % sr(sT))
        a("s_lshl_b64 exec, 1, s62")
        a("v_mov_b32 %s, s60" % vr(vDg1))
        a("s_mov_b64 exec, -1")
        a("s_memtime s[60:61]")

    def dma_k():
        for n in range(4):
            a("buffer_load_dwordx4 %s, %s, %s offen offset:%d%s lds" % (vr(vKoff + n), sr(srdK, 4), sr(sOffK), n * 1024, polk))

    def dma_v():
        for n in range(4):
            a("buffer_load_dwordx4 %s, %s, %s offen offset:%d%s lds" % (vr(vVoff + (n & 1)), sr(srdV, 4), sr(sOffV), n * 1024, polv_))

    a("s_cmp_ge_u32 s2, 256")
    a("s_cbranch_scc1 L_done")
    a("s_load_dwordx8 s[4:11], s[0:1], 0")
    a("s_load_dwordx4 s[12:15], s[0:1], 32")
    if diag:
        stamp_real(0)
    a("v_lshrrev_b32 v1, 6, v0")
    a("v_and_b32 v0, 63, v0")
    a("v_readfirstlane_b32 %s, v1" % sr(sW))
    a("v_and_b32 v2, 15, v0")
    a("v_lshrrev_b32 v3, 4, v0")
    a("v_xor_b32 v4, v2, v3")
    a("v_lshlrev_b32 v4, 4, v4")
    a("v_lshlrev_b32 v5, 12, v1")
    a("v_lshl_or_b32 v5, v3, 8, v5")
    a("v_or_b32 %s, v5, v4" % vr(vKoff))
    for n in range(1, 4):
        a("v_xor_b32 %s, %d, %s" % (vr(vKoff + n), n << 6, vr(vKoff)))
    a("v_lshlrev_b32 v6, 1, v3")
    a("v_xor_b32 v6, v6, v2")
    a("v_lshl_or_b32 %s, v6, 4, v5" % vr(vVoff))
    a("v_xor_b32 %s, 0x80, %s" % (vr(vVoff + 1), vr(vVoff)))
    a("v_lshlrev_b32 v6, 12, v1")
    a("v_lshl_or_b32 v6, v2, 8, v6")
    a("v_lshl_or_b32 v7, v3, 4, v6")
    if wgmap == 1:
        a("s_and_b32 %s, s2, 63" % sr(sGrp))
        a("s_lshr_b32 %s, s2, 6" % sr(sSpl))
    elif wgmap == 0:
        a("s_lshr_b32 %s, s2, 2" % sr(sGrp))
        a("s_and_b32 %s, s2, 3" % sr(sSpl))
    else:
        a("s_and_b32 %s, s2, 7" % sr(sTmp))
        a("s_lshr_b32 %s, %s, 1" % (sr(sSpl), sr(sTmp)))
        a("s_xor_b32 %s, %s, %s" % (sr(sTmp), sr(sTmp), sr(sSpl)))
        a("s_and_b32 %s, %s, 1" % (sr(sTmp), sr(sTmp)))
        a("s_lshr_b32 %s, s2, 3" % sr(sGrp))
        a("s_lshl_b32 %s, %s, 1" % (sr(sGrp), sr(sGrp)))
        a("s_or_b32 %s, %s, %s" % (sr(sGrp), sr(sGrp), sr(sTmp)))
    a("s_lshl_b32 %s, %s, 21" % (sr(sTmp), sr(sGrp)))
    a("s_lshl_b32 %s, %s, 14" % (sr(sTmp2), sr(sSpl)))
    a("s_add_u32 %s, %s, %s" % (sr(sTmp), sr(sTmp), sr(sTmp2)))
    a("s_sub_u32 %s, 0x200000, %s" % (sr(srdK + 2), sr(sTmp2)))
    a("s_mov_b32 %s, %s" % (sr(srdV + 2), sr(srdK + 2)))
    a("s_mov_b32 %s, 0x20000" % sr(srdK + 3))
    a("s_mov_b32 %s, 0x20000" % sr(srdV + 3))
    a("s_mov_b32 %s, 0x20000" % sr(srdQ + 3))
    a("s_mov_b32 %s, 0x100000" % sr(srdQ + 2))
    a("s_lshl_b32 %s, %s, 14" % (sr(sTmp2), sr(sGrp)))
    a("s_lshl_b32 %s, %s, 12" % (sr(sW4), sr(sW)))
    a("s_mov_b32 %s, %s" % (sr(sM0K), sr(sW4)))
    a("s_add_u32 %s, %s, %d" % (sr(sM0V), sr(sW4), (N - 1) * U))
    a("s_mov_b32 %s, 0" % sr(sOffK))
    a("s_mov_b32 %s, 0x40000000" % sr(sOffV))
    a("s_mov_b32 %s, %d" % (sr(sT), N - 1))
    a("s_mov_b32 %s, 0x%x" % (sr(srdW + 2), (32 << 20) if diag else CTL_OFF + 64 * 256))
    a("s_mov_b32 %s, 0x20000" % sr(srdW + 3))
    a("s_lshl_b32 %s, %s, 8" % (sr(sCtl), sr(sGrp)))
    a("s_add_u32 %s, %s, 0x%x" % (sr(sCtl), sr(sCtl), CTL_OFF))
    a("s_or_b32 %s, %s, %s" % (sr(sInit), sr(sW), sr(sSpl)))
    a("s_waitcnt lgkmcnt(0)")
    if diag:
        stamp_real(1)
    a("s_add_u32 %s, %s, %s" % (sr(srdK), sr(sK), sr(sTmp)))
    a("s_addc_u32 %s, %s, 0" % (sr(srdK + 1), sr(sK + 1)))
    a("s_add_u32 %s, %s, %s" % (sr(srdV), sr(sV), sr(sTmp)))
    a("s_addc_u32 %s, %s, 0" % (sr(srdV + 1), sr(sV + 1)))
    a("s_mov_b32 %s, %s" % (sr(srdQ), sr(sQ)))
    a("s_mov_b32 %s, %s" % (sr(srdQ + 1), sr(sQ + 1)))

    RMASK = N * U - 1

    def refill_v():
        a("s_or_b32 m0, %s, 0x%x" % (sr(sM0V), VBASE))
        a("s_mov_b32 %s, %s" % (sr(sM0V), sr(sM0K)))
        dma_v()

    def refill_k_static():
        a("s_mov_b32 m0, %s" % sr(sM0K))
        a("s_mov_b32 %s, %s" % (sr(sOffV), sr(sOffK)))
        dma_k()
        a("s_add_u32 %s, %s, %d" % (sr(sM0K), sr(sM0K), U))
        a("s_add_u32 %s, %s, %d" % (sr(sOffK), sr(sOffK), tstride))
        a("s_and_b32 %s, %s, 0x%x" % (sr(sM0K), sr(sM0K), RMASK))

    def refill_k_dyn(ds):
        if ds is not None:
            ds.need([("CLAIM",)])
        a("v_readfirstlane_b32 %s, %s" % (sr(sR), vr(vR)))
        a("s_add_u32 %s, %s, 2" % (sr(sJ), sr(sT)))
        a("s_mov_b32 m0, %s" % sr(sM0K))
        a("s_add_u32 %s, %s, %s" % (sr(sR), sr(sR), sr(sDynBase)))
        a("s_lshl_b32 %s, %s, 14" % (sr(sR), sr(sR)))
        a("s_cmp_lt_u32 %s, %d" % (sr(sJ), S))
        a("s_cselect_b32 %s, %s, %s" % (sr(sOffK), sr(sStat), sr(sR)))
        dma_k()
        a("s_add_u32 %s, %s, %d" % (sr(sStat), sr(sStat), tstride))
        a("s_cmp_ge_u32 %s, %s" % (sr(sOffK), sr(srdK + 2)))
        a("s_cselect_b32 %s, %s, %s" % (sr(sJ), sr(sJ), sr(sEnd)))
        a("s_min_u32 %s, %s, %s" % (sr(sEnd), sr(sEnd), sr(sJ)))
        a("s_mov_b32 %s, %s" % (sr(sOffV), sr(sOffK)))
        a("s_add_u32 %s, %s, %d" % (sr(sM0K), sr(sM0K), U))
        a("s_and_b32 %s, %s, 0x%x" % (sr(sM0K), sr(sM0K), RMASK))

    a("s_mov_b32 %s, %s" % (sr(srdW), sr(sWs)))
    a("s_mov_b32 %s, %s" % (sr(srdW + 1), sr(sWs + 1)))
    for j in range(4):
        a("buffer_load_dwordx4 %s, v7, %s, %s offen offset:%d" % (vr(vQ + 4 * j, 4), sr(srdQ, 4), sr(sTmp2), j * 64))
    a("s_cmp_lg_u32 %s, 0" % sr(sInit))
    a("s_cbranch_scc1 L_nohdr")
    a("s_mov_b64 exec, 1")
    a("buffer_load_dword %s, off, %s, %s offset:4 sc1" % (vr(vH), sr(srdW, 4), sr(sCtl)))
    a("s_mov_b64 exec, -1")
    a.label("L_nohdr")

    a.label("L_fill")
    refill_v()
    refill_k_static()
    a("s_sub_u32 %s, %s, 1" % (sr(sT), sr(sT)))
    a("s_cmp_lg_u32 %s, 0" % sr(sT))
    a("s_cbranch_scc1 L_fill")
    if diag:
        stamp_real(2)
    a("v_lshlrev_b32 v6, 8, v2")
    a("v_or_b32 %s, v6, v4" % vr(vKa))
    for j in range(1, 4):
        a("v_xor_b32 %s, %d, %s" % (vr(vKa + j), j << 6, vr(vKa)))
    a("v_lshrrev_b32 v5, 2, v2")
    a("v_lshl_or_b32 v5, v3, 2, v5")
    a("v_and_b32 v6, 7, v5")
    a("v_lshlrev_b32 v6, 5, v6")
    a("v_lshl_or_b32 v6, v5, 8, v6")
    a("v_and_b32 v5, 3, v2")
    a("v_lshl_or_b32 v6, v5, 3, v6")
    for db in range(8):
        a("v_xor_b32 v5, %d, v6" % (db << 5))
        a("v_add_u32 %s, %d, v5" % (vr(vVa + db), VBASE + (N - 1) * U))
    for k in range(32):
        a("v_mov_b32 %s, 0" % vr(vO + k))
    for k in range(8):
        a("v_mov_b32 %s, 0" % vr(vP + k))
    a("v_mov_b32 %s, 0xff800000" % vr(vMC))
    a("v_mov_b32 %s, 0" % vr(vL))
    a("v_mov_b32 %s, 1" % vr(vC))
    a("v_mov_b32 %s, 0x%x" % (vr(vLq), LDSQ))
    a("s_mov_b32 %s, 0x%08x" % (sr(sC), f2u(cscale)))
    a("s_mov_b32 %s, 0x%08x" % (sr(sThr), f2u(thr)))
    a("s_mov_b32 %s, 0" % sr(sT))
    a("s_mov_b32 %s, %d" % (sr(sDNeg), -(N - 1) * U))
    a("s_mov_b32 %s, %d" % (sr(sDPos), U))
    a("s_mov_b32 %s, %d" % (sr(sDV), -(N - 1) * U))
    a("s_mov_b32 %s, %s" % (sr(srdO), sr(sOut)))
    a("s_mov_b32 %s, %s" % (sr(srdO + 1), sr(sOut + 1)))
    a("s_mov_b32 %s, 0x100000" % sr(srdO + 2))
    a("s_mov_b32 %s, 0x20000" % sr(srdO + 3))
    a("s_mov_b32 %s, %s" % (sr(srdD), sr(sDbg)))
    a("s_mov_b32 %s, %s" % (sr(srdD + 1), sr(sDbg + 1)))
    a("s_mov_b32 %s, 256" % sr(srdD + 2))
    a("s_mov_b32 %s, 0x20000" % sr(srdD + 3))
    a("s_lshl_b32 %s, %s, 2" % (sr(sDbgOff), sr(sGrp)))
    a("s_mov_b32 %s, 0" % sr(sEvt))
    a("s_mov_b32 %s, %d" % (sr(sEnd), 32 if not dyn else S + POOL + 1))
    a("s_mov_b32 %s, %s" % (sr(sStat), sr(sOffK)))
    a("s_sub_u32 %s, %d, %s" % (sr(sDynBase), 4 * S, sr(sSpl)))
    a("s_cmp_eq_u32 %s, 0" % sr(sW))
    a("s_cselect_b32 %s, %d, -1" % (sr(sDyn), S - 5))
    if diag:
        a("v_mov_b32 %s, 0" % vr(vDg1))
        a("v_mov_b32 %s, 0" % vr(vDg2))
        a("s_mov_b32 s60, 0")
        stamp_real(3)

    ds = DS(a)
    Sg = lambda k: vr(vS + k)
    X = lambda k: vr(vX + k)
    t = lambda k: vr(vT + k)

    def qk1(kb, j):
        ds.need([("K", kb, j)])
        a("v_mfma_f32_16x16x32_bf16 %s, %s, %s, %s" % (vr(vS + 4 * kb, 4), vr(vK + 16 * kb + 4 * j, 4), vr(vQ + 4 * j, 4),
                                                     "0" if j == 0 else vr(vS + 4 * kb, 4)))

    def vread(db, s):
        b = vV + 8 * db + 4 * s
        ds.issue("ds_read_b64_tr_b16 %s, %s offset:%d" % (vr(b, 2), vr(vVa + db), (2 * s) * 4096), ("V", db, s, 0))
        ds.issue("ds_read_b64_tr_b16 %s, %s offset:%d" % (vr(b + 2, 2), vr(vVa + db), (2 * s + 1) * 4096), ("V", db, s, 1))

    def pv1(db, s):
        ds.need([("V", db, s, 1)])
        a("v_mfma_f32_16x16x32_bf16 %s, %s, %s, %s" % (vr(vO + 4 * db, 4), vr(vV + 8 * db + 4 * s, 4), vr(vP + 4 * s, 4), vr(vO + 4 * db, 4)))

    def sm_fma(k):
        a("v_fma_f32 %s, %s, %s, -%s" % (X(k), Sg(k), sr(sC), vr(vMC)))

    def sm_exp(k):
        a("v_exp_f32 %s, %s" % (X(k), X(k)))

    def cvt(k):
        a("v_cvt_pk_bf16_f32 %s, %s, %s" % (vr(vP + k), X(2 * k), X(2 * k + 1)))

    a.label("L_loop")
    a("s_waitcnt vmcnt(%d)" % VM)
    if dyn:
        a("s_cmp_ge_u32 %s, %s" % (sr(sT), sr(sDyn)))
        a("s_cbranch_scc0 L_nb")
        a("s_sub_u32 %s, %s, %d" % (sr(sTmp), sr(sT), S - 3))
        a("s_lshl_b64 exec, 1, %s" % sr(sTmp))
        a("ds_write_b32 %s, %s" % (vr(vLq), vr(vC)))
        a("s_mov_b64 exec, -1")
        a("s_waitcnt lgkmcnt(0)")
        a.label("L_nb")
    a("s_barrier")
    if dyn:
        ds.issue("ds_read_b32 %s, %s" % (vr(vR), vr(vLq)), ("CLAIM",))
    a("s_cmp_eq_u32 %s, %s" % (sr(sT), sr(sEvt)))
    a("s_cbranch_scc1 L_svc")
    a.label("L_svcret")
    if dyn:
        a("s_cmp_ge_u32 %s, %s" % (sr(sT), sr(sDyn)))
        a("s_cbranch_scc0 L_na")
        a("s_sub_u32 %s, %s, %d" % (sr(sTmp), sr(sT), S - 5))
        a("s_lshl_b64 exec, 1, %s" % sr(sTmp))
        a("buffer_atomic_add %s, off, %s, %s sc0" % (vr(vC), sr(srdW, 4), sr(sCtl)))
        a("s_mov_b64 exec, -1")
        a.label("L_na")
    if diag:
        stamp_tile()
        a("s_cmp_lg_u32 %s, 0" % sr(sT))
        a("s_cbranch_scc1 L_nost")
        stamp_real(4)
        a.label("L_nost")
    a("s_add_u32 %s, %s, 1" % (sr(sT), sr(sT)))
    refill_k = (lambda: refill_k_dyn(ds)) if dyn else refill_k_static
    if nocompute:
        refill_v()
        refill_k()
        if dyn:
            a("v_xor_b32 %s, 4, %s" % (vr(vLq), vr(vLq)))
        ds.done = len(ds.q)
        ds.reset()
    else:
        units = [("K", 0, j) for j in range(4)] + [("K", 1, j) for j in range(4)] + [("V", db, 0) for db in range(8)] + \
                [("K", 2, j) for j in range(4)] + [("K", 3, j) for j in range(4)] + [("V", db, 1) for db in range(8)]

        def issue(u):
            if u >= 32:
                return
            kind, x, y = units[u]
            if kind == "K":
                ds.issue("ds_read_b128 %s, %s offset:%d" % (vr(vK + 16 * x + 4 * y, 4), vr(vKa + y), x * 4096), ("K", x, y))
            else:
                vread(x, y)

        def tag(u):
            kind, x, y = units[u]
            return ("K", x, y) if kind == "K" else ("V", x, y, 1)

        def mfma(u):
            kind, x, y = units[u]
            if u % 2 == 0:
                ds.need([tag(u + 1)])
            if kind == "K":
                qk1(x, y)
            else:
                pv1(x, y)

        def padd(d, x, y):
            a("v_add_f32 %s, %s, %s" % (d, x, y))

        D = DIST
        for u in range(D):
            issue(u)
        refill_v()
        a("s_and_b32 %s, %s, %d" % (sr(sTmp), sr(sT), N - 1))
        a("s_cselect_b32 %s, %s, %s" % (sr(sDK), sr(sDPos), sr(sDNeg)))
        fill = {i: [] for i in range(33)}
        F = lambda i, fn, *args: fill[i].append((fn, args))
        for h, base in ((0, 8), (1, 24)):
            k0 = 8 * h
            for m in range(8):
                F(base + m, sm_fma, k0 + m)
                F(base + m + 1, sm_exp, k0 + m)
        F(17, padd, t(0), X(0), X(1)); F(17, padd, t(1), X(2), X(3))
        F(18, padd, t(2), X(4), X(5)); F(18, padd, t(3), X(6), X(7))
        F(19, cvt, 0); F(19, cvt, 1)
        F(20, cvt, 2); F(20, cvt, 3)
        F(21, padd, t(0), t(0), t(1)); F(21, padd, t(2), t(2), t(3))
        F(22, padd, t(0), t(0), t(2))
        def kadd(j):
            a("v_add_u32 %s, %s, %s" % (vr(vKa + j), sr(sDK), vr(vKa + j)))
        def vadd(db):
            a("v_add_u32 %s, %s, %s" % (vr(vVa + db), sr(sDV), vr(vVa + db)))
        lastK = max(u for u in range(32) if units[u][0] == "K") - D
        for j in range(4):
            F(lastK + 1 + j // 2, kadd, j)
        for db in range(8):
            F(24 - D + db + 1 if 24 - D + db + 1 <= 32 else 32, vadd, db)
        F(kslot, refill_k)
        if dyn:
            F(kslot + 1, lambda: a("v_xor_b32 %s, 4, %s" % (vr(vLq), vr(vLq))))
        for u in range(32):
            mfma(u)
            issue(u + D)
            for fn, args in fill[u]:
                fn(*args)
        for fn, args in fill[32]:
            fn(*args)
        padd(t(1), X(8), X(9))
        padd(t(2), X(10), X(11))
        padd(t(3), X(12), X(13))
        cvt(4); cvt(5)
        padd(t(4), X(14), X(15))
        padd(t(0), t(0), t(1))
        padd(t(2), t(2), t(3))
        cvt(6)
        padd(t(0), t(0), t(4))
        cvt(7)
        padd(t(0), t(0), t(2))
        a("v_cmp_nge_f32 vcc, %s, %s" % (sr(sThr), t(0)))
        a("s_mov_b32 %s, %s" % (sr(sDV), sr(sDK)))
        a("s_cbranch_vccnz L_slow")
        a.label("L_back")
        a("v_add_f32 %s, %s, %s" % (vr(vL), vr(vL), t(0)))
        ds.reset()
    a("s_cmp_lt_u32 %s, %s" % (sr(sT), sr(sEnd)))
    a("s_cbranch_scc1 L_loop")

    G = vK
    R = vV
    for n in range(12):
        a("v_mov_b32 %s, %s" % (vr(G + 4 * n + 3), sr(sTag)))
    a("s_lshl_b32 %s, %s, 2" % (sr(sTmp), sr(sGrp)))
    a("s_add_u32 %s, %s, %s" % (sr(sTmp2), sr(sTmp), sr(sW)))
    a("s_lshl_b32 %s, %s, 2" % (sr(sTmp2), sr(sTmp2)))
    a("s_add_u32 %s, %s, %s" % (sr(sTmp2), sr(sTmp2), sr(sSpl)))
    a("s_mul_i32 %s, %s, %d" % (sr(44), sr(sTmp2), WSLOT))
    for v in range(1, 4):
        a("s_add_u32 %s, %s, %d" % (sr(44 + v), sr(44), 3072 * v))
    a("s_add_u32 %s, %s, %s" % (sr(sTmp2), sr(sTmp), sr(sSpl)))
    a("s_mul_i32 %s, %s, %d" % (sr(sTmp2), sr(sTmp2), 4 * WSLOT))
    a("s_mul_i32 %s, %s, 3072" % (sr(sTmp), sr(sW)))
    a("s_add_u32 %s, %s, %s" % (sr(sTmp2), sr(sTmp2), sr(sTmp)))
    sIn = 64 if not diag else 92
    for s in range(4):
        a("s_add_u32 %s, %s, %d" % (sr(sIn + s), sr(sTmp2), s * WSLOT))
    a("v_lshlrev_b32 v2, 4, v0")
    a("s_waitcnt vmcnt(%d)" % (VM + 4))
    a("s_barrier")
    if not nocompute:
        for db in range(3):
            vread(db, 0); vread(db, 1)
        for db in range(8):
            pv1(db, 0); pv1(db, 1)
            if db + 3 < 8:
                vread(db + 3, 0); vread(db + 3, 1)
        ds.reset()

    if diag:
        stamp_real(5)
        a("s_add_u32 s62, %s, 63" % sr(sT))
        a("s_lshl_b64 exec, 1, s62")
        a("v_mov_b32 %s, s60" % vr(vDg1))
        a("s_mov_b64 exec, -1")
    a("v_mov_b32 %s, %s" % (t(1), vr(vL)))
    a("v_permlane32_swap_b32 %s, %s" % (t(1), vr(vL)))
    a("v_add_f32 %s, %s, %s" % (vr(vL), vr(vL), t(1)))
    a("v_mov_b32 %s, %s" % (t(1), vr(vL)))
    a("v_permlane16_swap_b32 %s, %s" % (t(1), vr(vL)))
    a("v_add_f32 %s, %s, %s" % (vr(vL), vr(vL), t(1)))
    a("v_rcp_f32 %s, %s" % (t(0), vr(vL)))
    a("v_log_f32 %s, %s" % (t(1), vr(vL)))
    a("v_add_f32 %s, %s, %s" % (t(1), t(1), vr(vMC)))
    pos = [0, 1, 2, 4, 5, 6, 8, 9]
    for v in range(4):
        for k in range(8):
            a("v_mul_f32 %s, %s, %s" % (vr(G + 12 * v + pos[k]), t(0), vr(vO + 8 * v + k)))
        a("v_mov_b32 %s, %s" % (vr(G + 12 * v + 10), t(1)))
        for gr in range(3):
            a("buffer_store_dwordx4 %s, v2, %s, %s offen offset:%d sc1" % (vr(G + 12 * v + 4 * gr, 4), sr(srdW, 4), sr(44 + v), gr * 1024))
    if diag:
        stamp_real(6)
    a("v_and_b32 v5, 15, v0")
    a("v_lshrrev_b32 v6, 4, v0")
    a("v_lshlrev_b32 v5, 8, v5")
    a("v_lshl_or_b32 v5, v6, 3, v5")
    a("s_lshl_b32 %s, %s, 6" % (sr(sTmp), sr(sW)))
    a("v_add_u32 v5, %s, v5" % sr(sTmp))
    a("s_lshl_b32 %s, %s, 14" % (sr(sTmp), sr(sGrp)))
    a("s_lshl_b32 %s, %s, 12" % (sr(sTmp2), sr(sSpl)))
    a("s_add_u32 %s, %s, %s" % (sr(sTmp), sr(sTmp), sr(sTmp2)))
    sMask, sCnt = 48, 49
    a("s_mov_b32 %s, 15" % sr(sMask))
    a("s_mov_b32 %s, 0" % sr(sCnt))
    a.label("L_poll")
    for s in range(4):
        if not pollall:
            a("s_bitcmp1_b32 %s, %d" % (sr(sMask), s))
            a("s_cbranch_scc0 L_pl%d" % s)
        for gr in range(3):
            a("buffer_load_dwordx4 %s, v2, %s, %s offen offset:%d sc1" % (vr(R + 12 * s + 4 * gr, 4), sr(srdW, 4), sr(sIn + s), gr * 1024))
        if not pollall:
            a.label("L_pl%d" % s)
    a("s_add_u32 %s, %s, 1" % (sr(sCnt), sr(sCnt)))
    a("s_waitcnt vmcnt(0)")
    for s in range(4):
        a("v_xor_b32 %s, %s, %s" % (t(2), sr(sTag), vr(R + 12 * s + 3)))
        a("v_xor_b32 %s, %s, %s" % (t(3), sr(sTag), vr(R + 12 * s + 7)))
        a("v_xor_b32 %s, %s, %s" % (t(4), sr(sTag), vr(R + 12 * s + 11)))
        a("v_or3_b32 %s, %s, %s, %s" % (t(2), t(2), t(3), t(4)))
        a("v_cmp_ne_u32 vcc, 0, %s" % t(2))
        a("s_cbranch_vccnz L_pm%d" % s)
        a("s_bitset0_b32 %s, %d" % (sr(sMask), s))
        a.label("L_pm%d" % s)
    a("s_cmp_ge_u32 %s, 0x8000" % sr(sCnt))
    a("s_cbranch_scc1 L_polled")
    a("s_cmp_lg_u32 %s, 0" % sr(sMask))
    a("s_cbranch_scc1 L_poll")
    a.label("L_polled")
    if diag:
        stamp_real(7)
    mm = lambda s: vr(R + 12 * s + 10)
    a("v_max3_f32 %s, %s, %s, %s" % (t(0), mm(0), mm(1), mm(2)))
    a("v_max_f32 %s, %s, %s" % (t(0), t(0), mm(3)))
    for s in range(4):
        a("v_sub_f32 %s, %s, %s" % (mm(s), mm(s), t(0)))
    for s in range(4):
        a("v_exp_f32 %s, %s" % (mm(s), mm(s)))
    a("v_add_f32 %s, %s, %s" % (t(1), mm(0), mm(1)))
    a("v_add_f32 %s, %s, %s" % (t(2), mm(2), mm(3)))
    a("v_add_f32 %s, %s, %s" % (t(1), t(1), t(2)))
    a("v_rcp_f32 %s, %s" % (t(1), t(1)))
    for k in range(8):
        a("v_mul_f32 %s, %s, %s" % (vr(vS + k), mm(0), vr(R + pos[k])))
    for s in range(1, 4):
        for k in range(8):
            a("v_fma_f32 %s, %s, %s, %s" % (vr(vS + k), mm(s), vr(R + 12 * s + pos[k]), vr(vS + k)))
    for k in range(8):
        a("v_mul_f32 %s, %s, %s" % (vr(vS + k), t(1), vr(vS + k)))
    for k in range(4):
        a("v_cvt_pk_bf16_f32 %s, %s, %s" % (vr(vP + k), vr(vS + 2 * k), vr(vS + 2 * k + 1)))
    for e in range(2):
        a("buffer_store_dwordx2 %s, v5, %s, %s offen offset:%d" % (vr(vP + 2 * e, 2), sr(srdO, 4), sr(sTmp), e * 32))
    if diag:
        stamp_real(8)
        a("s_waitcnt lgkmcnt(0)")
        for idx in range(9):
            a("s_lshl_b64 exec, 1, %d" % idx)
            a("v_mov_b32 %s, s%d" % (vr(vDg2), 64 + 2 * idx))
        a("s_lshl_b64 exec, 1, 12")
        a("v_mov_b32 %s, %s" % (vr(vDg2), sr(sT)))
        a("s_lshl_b64 exec, 1, 13")
        a("v_mov_b32 %s, %s" % (vr(vDg2), sr(sCnt)))
        a("s_getreg_b32 s60, hwreg(HW_REG_XCC_ID)")
        a("s_lshl_b64 exec, 1, 14")
        a("v_mov_b32 %s, s60" % vr(vDg2))
        a("s_getreg_b32 s60, hwreg(HW_REG_HW_ID)")
        a("s_lshl_b64 exec, 1, 15")
        a("v_mov_b32 %s, s60" % vr(vDg2))
        a("s_mov_b64 exec, -1")
        a("s_lshl_b32 s60, s2, 2")
        a("s_add_u32 s60, s60, %s" % sr(sW))
        a("s_lshl_b32 s60, s60, 9")
        a("s_add_u32 s60, s60, 0x1000000")
        a("v_lshlrev_b32 v1, 2, v0")
        a("buffer_store_dword %s, v1, %s, s60 offen" % (vr(vDg1), sr(srdW, 4)))
        a("buffer_store_dword %s, v1, %s, s60 offen offset:256" % (vr(vDg2), sr(srdW, 4)))
    a.label("L_done")
    a("s_endpgm")

    a.label("L_svc")
    a("s_cmp_eq_u32 %s, 0" % sr(sT))
    a("s_cbranch_scc1 L_svcB")
    a("s_cmp_eq_u32 %s, 3" % sr(sT))
    a("s_cbranch_scc1 L_svcC")
    a("s_cmp_eq_u32 %s, %d" % (sr(sT), D0))
    a("s_cbranch_scc1 L_svcD")
    a("s_mov_b32 %s, -1" % sr(sEvt))
    a("v_readfirstlane_b32 %s, %s" % (sr(sTag), vr(vH)))
    a("s_mov_b32 %s, 0" % sr(sTmp))
    a("s_cmp_lg_u32 %s, 0" % sr(sTag))
    a("s_cbranch_scc1 L_svcret")
    a.label("L_spin")
    a("buffer_load_dword %s, off, %s, %s sc1" % (vr(vH), sr(srdD, 4), sr(sDbgOff)))
    a("s_add_u32 %s, %s, 1" % (sr(sTmp), sr(sTmp)))
    a("s_waitcnt vmcnt(0)")
    a("v_readfirstlane_b32 %s, %s" % (sr(sTag), vr(vH)))
    a("s_cmp_ge_u32 %s, 0x8000" % sr(sTmp))
    a("s_cbranch_scc1 L_svcret")
    a("s_cmp_eq_u32 %s, 0" % sr(sTag))
    a("s_cbranch_scc1 L_spin")
    a("s_branch L_svcret")
    a.label("L_svcB")
    a("s_mov_b32 %s, 3" % sr(sEvt))
    a("s_cmp_lg_u32 %s, 0" % sr(sInit))
    a("s_cbranch_scc1 L_svcret")
    a("v_readfirstlane_b32 %s, %s" % (sr(sTag), vr(vH)))
    a("v_mov_b32 %s, 0" % vr(vPair))
    a("s_add_u32 %s, %s, 1" % (sr(sTag), sr(sTag)))
    a("s_addc_u32 %s, %s, 0" % (sr(sTag), sr(sTag)))
    a("v_mov_b32 %s, %s" % (vr(vPair + 1), sr(sTag)))
    a("s_mov_b64 exec, 1")
    a("buffer_store_dwordx2 %s, off, %s, %s sc1" % (vr(vPair, 2), sr(srdW, 4), sr(sCtl)))
    a("s_mov_b64 exec, -1")
    a("s_branch L_svcret")
    a.label("L_svcC")
    a("s_mov_b32 %s, %d" % (sr(sEvt), D0))
    a("s_cmp_lg_u32 %s, 0" % sr(sInit))
    a("s_cbranch_scc1 L_svcret")
    a("s_mov_b64 exec, 1")
    a("buffer_store_dword %s, off, %s, %s sc1" % (vr(vPair + 1), sr(srdD, 4), sr(sDbgOff)))
    a("s_mov_b64 exec, -1")
    a("s_branch L_svcret")
    a.label("L_svcD")
    a("s_mov_b32 %s, %d" % (sr(sEvt), D0 + 3))
    a("s_mov_b64 exec, 1")
    a("buffer_load_dword %s, off, %s, %s sc1" % (vr(vH), sr(srdD, 4), sr(sDbgOff)))
    a("s_mov_b64 exec, -1")
    a("s_branch L_svcret")

    if not nocompute:
        a.label("L_slow")
        a("s_nop 7")
        a("v_max3_f32 %s, %s, %s, %s" % (t(0), Sg(0), Sg(1), Sg(2)))
        a("v_max3_f32 %s, %s, %s, %s" % (t(1), Sg(3), Sg(4), Sg(5)))
        a("v_max3_f32 %s, %s, %s, %s" % (t(2), Sg(6), Sg(7), Sg(8)))
        a("v_max3_f32 %s, %s, %s, %s" % (t(0), t(0), Sg(9), Sg(10)))
        a("v_max3_f32 %s, %s, %s, %s" % (t(1), t(1), Sg(11), Sg(12)))
        a("v_max3_f32 %s, %s, %s, %s" % (t(2), t(2), Sg(13), Sg(14)))
        a("v_max3_f32 %s, %s, %s, %s" % (t(0), t(0), t(1), Sg(15)))
        a("v_max_f32 %s, %s, %s" % (t(0), t(0), t(2)))
        a("v_mov_b32 %s, %s" % (t(1), t(0)))
        a("v_permlane32_swap_b32 %s, %s" % (t(1), t(0)))
        a("v_max_f32 %s, %s, %s" % (t(0), t(0), t(1)))
        a("v_mov_b32 %s, %s" % (t(1), t(0)))
        a("v_permlane16_swap_b32 %s, %s" % (t(1), t(0)))
        a("v_max_f32 %s, %s, %s" % (t(0), t(0), t(1)))
        a("v_mul_f32 %s, %s, %s" % (t(0), sr(sC), t(0)))
        a("v_max_f32 %s, %s, %s" % (t(0), t(0), vr(vMC)))
        a("v_sub_f32 %s, %s, %s" % (t(1), vr(vMC), t(0)))
        a("v_mov_b32 %s, %s" % (vr(vMC), t(0)))
        a("v_exp_f32 %s, %s" % (vr(vAl), t(1)))
        for k in range(16):
            sm_fma(k)
        for k in range(16):
            sm_exp(k)
        a("v_mul_f32 %s, %s, %s" % (vr(vL), vr(vAl), vr(vL)))
        for k in range(32):
            a("v_mul_f32 %s, %s, %s" % (vr(vO + k), vr(vAl), vr(vO + k)))
        a("v_add_f32 %s, %s, %s" % (t(0), X(0), X(1)))
        for k in range(2, 16):
            a("v_add_f32 %s, %s, %s" % (t(0), t(0), X(k)))
        for k in range(8):
            cvt(k)
        a("s_branch L_back")

    loops = [("L_loop", "s_cbranch_scc1 L_loop"), ("L_poll", "s_cbranch_scc1 L_poll"), ("L_fill", "s_cbranch_scc1 L_fill"),
             ("L_spin", "s_cbranch_scc1 L_spin")]
    body, nadd = pad_hazards(a.lines, loops=loops)
    out = []
    out.append("; params: N=%d pol=%r wgmap=%d dyn=%d S=%d diag=%d nocompute=%d" % (N, pol, wgmap, dyn, S, diag, nocompute))
    out.append("; @launch grid=(256,1,1) block=(256,1,1) lds=%d" % LDS)
    out.append('.amdgcn_target "amdgcn-amd-amdhsa--gfx950"')
    out.append(".text")
    out.append(".globl %s_kernel" % NAME)
    out.append(".p2align 8")
    out.append(".type %s_kernel,@function" % NAME)
    out.append("%s_kernel:" % NAME)
    for ln in body:
        out.append(ln if ln.endswith(":") else "    " + ln)
    out.append('.section .rodata,"a"')
    out.append(".p2align 6")
    out.append(".amdhsa_kernel %s_kernel" % NAME)
    out.append("  .amdhsa_next_free_vgpr 256")
    out.append("  .amdhsa_next_free_sgpr 96")
    out.append("  .amdhsa_accum_offset 256")
    out.append("  .amdhsa_group_segment_fixed_size 0")
    out.append("  .amdhsa_kernarg_size 48")
    out.append("  .amdhsa_user_sgpr_count 2")
    out.append("  .amdhsa_user_sgpr_kernarg_segment_ptr 1")
    out.append("  .amdhsa_system_sgpr_workgroup_id_x 1")
    out.append(".end_amdhsa_kernel")
    return "\n".join(out) + "\n", nadd


if __name__ == "__main__":
    ap = argparse.ArgumentParser()
    ap.add_argument("-o", default="cdna_kernels/%s.s" % NAME)
    ap.add_argument("--pol", default="nt")
    ap.add_argument("--wgmap", type=int, default=2)
    ap.add_argument("--diag", type=int, default=0)
    ap.add_argument("--nocompute", type=int, default=0)
    ap.add_argument("--polv", default=None)
    ap.add_argument("--dist", type=int, default=7)
    ap.add_argument("--dyn", type=int, default=1)
    ap.add_argument("--S", type=int, default=20)
    ap.add_argument("--kslot", type=int, default=2)
    ap.add_argument("--pollall", type=int, default=0)
    args = ap.parse_args()
    txt, nadd = gen(pol=args.pol, wgmap=args.wgmap, diag=args.diag, nocompute=args.nocompute, DIST=args.dist, polv=args.polv,
                    dyn=args.dyn, S=args.S, kslot=args.kslot, pollall=args.pollall)
    open(args.o, "w").write(txt)
    print("wrote", args.o, "nops inserted:", nadd, "lines:", txt.count("\n"))
```

```python
import argparse, math, struct
from asmlib import Asm, pad_hazards

NAME = "standalone__gqa_softmax__sampling"


def vr(b, n=1):
    return "v%d" % b if n == 1 else "v[%d:%d]" % (b, b + n - 1)


def sr(b, n=1):
    return "s%d" % b if n == 1 else "s[%d:%d]" % (b, b + n - 1)


class DS:
    def __init__(self, a):
        self.a = a
        self.q = []
        self.done = 0

    def issue(self, text, tag):
        self.a(text)
        self.q.append(tag)

    def need(self, tags):
        idx = max(i for i, t in enumerate(self.q) if t in tags)
        if idx < self.done:
            return
        n = min(len(self.q) - 1 - idx, 14)
        self.a("s_waitcnt lgkmcnt(%d)" % n)
        self.done = len(self.q) - n

    def reset(self):
        assert self.done == len(self.q), (self.done, len(self.q))
        self.q = []
        self.done = 0


def gen(N=4, pol="nt", wgmap=2, diag=0, nocompute=0, thr=256.0, DIST=7, polv=None, dyn=1, S=20, kslot=2, pollall=0, xg=3):
    a = Asm()
    assert N == 4
    if not dyn:
        S = 32
    POOL = 128 - 4 * S
    D0 = 11 if not dyn else min(11, S - 9)
    assert D0 >= 5
    U = 16384
    KBASE, VBASE = 0, N * U
    LDSQ = 2 * N * U
    SELF = 2 * N * U + 64
    LDS = SELF + 8192 + 128
    VM = 8 * (N - 2)
    sQ, sK, sV, sOut, sDbg, sWs = 4, 6, 8, 10, 12, 14
    srdK, srdV, srdQ, srdW, srdO, srdD = 16, 20, 24, 28, 32, 36
    sW, sGrp, sSpl, sT = 40, 41, 42, 43
    sOffK, sOffV, sM0K, sM0V = 44, 45, 46, 47
    sDK, sDV, sC, sTmp, sTmp2, sThr = 48, 49, 50, 52, 53, 54
    sW4 = 58
    sDNeg, sDPos = 59, 63
    sEvt, sTag, sEnd, sDyn, sR, sInit, sStat, sDynBase, sCtl, sDbgOff, sJ = 82, 83, 84, 85, 86, 87, 88, 89, 90, 91, 92
    vC, vLq, vR, vH, vPair = 1, 3, 4, 27, 6
    vKoff, vVoff, vKa, vVa = 8, 12, 14, 18
    vMC, vL, vAl = 26, 28, 29
    vT = 30
    vDg1, vDg2 = 38, 39
    vQ, vS, vP, vO, vK, vV, vX = 40, 56, 72, 80, 112, 176, 240
    WSLOT = 8448
    CTL_OFF = 12 << 20
    cscale = (128 ** -0.5) * math.log2(math.e)
    f2u = lambda x: struct.unpack("<I", struct.pack("<f", x))[0]
    tstride = 65536
    polk = (" " + pol) if pol else ""
    polv_ = polk if polv is None else ((" " + polv) if polv else "")

    def stamp_real(idx):
        a("s_memrealtime s[%d:%d]" % (64 + 2 * idx, 65 + 2 * idx))

    def stamp_tile():
        a("s_add_u32 s62, %s, 63" % sr(sT))
        a("s_lshl_b64 exec, 1, s62")
        a("v_mov_b32 %s, s60" % vr(vDg1))
        a("s_mov_b64 exec, -1")
        a("s_memtime s[60:61]")

    def dma_k():
        for n in range(4):
            a("buffer_load_dwordx4 %s, %s, %s offen offset:%d%s lds" % (vr(vKoff + n), sr(srdK, 4), sr(sOffK), n * 1024, polk))

    def dma_v():
        for n in range(4):
            a("buffer_load_dwordx4 %s, %s, %s offen offset:%d%s lds" % (vr(vVoff + (n & 1)), sr(srdV, 4), sr(sOffV), n * 1024, polv_))

    a("s_cmp_ge_u32 s2, 256")
    a("s_cbranch_scc1 L_done")
    a("s_load_dwordx8 s[4:11], s[0:1], 0")
    a("s_load_dwordx4 s[12:15], s[0:1], 32")
    if diag:
        stamp_real(0)
    a("v_lshrrev_b32 v1, 6, v0")
    a("v_and_b32 v0, 63, v0")
    a("v_readfirstlane_b32 %s, v1" % sr(sW))
    a("v_and_b32 v2, 15, v0")
    a("v_lshrrev_b32 v3, 4, v0")
    a("v_xor_b32 v4, v2, v3")
    a("v_lshlrev_b32 v4, 4, v4")
    a("v_lshlrev_b32 v5, 12, v1")
    a("v_lshl_or_b32 v5, v3, 8, v5")
    a("v_or_b32 %s, v5, v4" % vr(vKoff))
    for n in range(1, 4):
        a("v_xor_b32 %s, %d, %s" % (vr(vKoff + n), n << 6, vr(vKoff)))
    a("v_lshlrev_b32 v6, 1, v3")
    a("v_xor_b32 v6, v6, v2")
    a("v_lshl_or_b32 %s, v6, 4, v5" % vr(vVoff))
    a("v_xor_b32 %s, 0x80, %s" % (vr(vVoff + 1), vr(vVoff)))
    a("v_lshlrev_b32 v6, 12, v1")
    a("v_lshl_or_b32 v6, v2, 8, v6")
    a("v_lshl_or_b32 v7, v3, 4, v6")
    if wgmap == 1:
        a("s_and_b32 %s, s2, 63" % sr(sGrp))
        a("s_lshr_b32 %s, s2, 6" % sr(sSpl))
    elif wgmap == 0:
        a("s_lshr_b32 %s, s2, 2" % sr(sGrp))
        a("s_and_b32 %s, s2, 3" % sr(sSpl))
    else:
        a("s_and_b32 %s, s2, 7" % sr(sTmp))
        a("s_lshr_b32 %s, %s, 1" % (sr(sSpl), sr(sTmp)))
        a("s_xor_b32 %s, %s, %s" % (sr(sTmp), sr(sTmp), sr(sSpl)))
        a("s_and_b32 %s, %s, 1" % (sr(sTmp), sr(sTmp)))
        a("s_lshr_b32 %s, s2, 3" % sr(sGrp))
        a("s_lshl_b32 %s, %s, 1" % (sr(sGrp), sr(sGrp)))
        a("s_or_b32 %s, %s, %s" % (sr(sGrp), sr(sGrp), sr(sTmp)))
    a("s_lshl_b32 %s, %s, 21" % (sr(sTmp), sr(sGrp)))
    a("s_lshl_b32 %s, %s, 14" % (sr(sTmp2), sr(sSpl)))
    a("s_add_u32 %s, %s, %s" % (sr(sTmp), sr(sTmp), sr(sTmp2)))
    a("s_sub_u32 %s, 0x200000, %s" % (sr(srdK + 2), sr(sTmp2)))
    a("s_mov_b32 %s, %s" % (sr(srdV + 2), sr(srdK + 2)))
    a("s_mov_b32 %s, 0x20000" % sr(srdK + 3))
    a("s_mov_b32 %s, 0x20000" % sr(srdV + 3))
    a("s_mov_b32 %s, 0x20000" % sr(srdQ + 3))
    a("s_mov_b32 %s, 0x100000" % sr(srdQ + 2))
    a("s_lshl_b32 %s, %s, 14" % (sr(sTmp2), sr(sGrp)))
    a("s_lshl_b32 %s, %s, 12" % (sr(sW4), sr(sW)))
    a("s_mov_b32 %s, %s" % (sr(sM0K), sr(sW4)))
    a("s_add_u32 %s, %s, %d" % (sr(sM0V), sr(sW4), (N - 1) * U))
    a("s_mov_b32 %s, 0" % sr(sOffK))
    a("s_mov_b32 %s, 0x40000000" % sr(sOffV))
    a("s_mov_b32 %s, %d" % (sr(sT), N - 1))
    a("s_mov_b32 %s, 0x%x" % (sr(srdW + 2), (32 << 20) if diag else CTL_OFF + 64 * 256))
    a("s_mov_b32 %s, 0x20000" % sr(srdW + 3))
    a("s_lshl_b32 %s, %s, 8" % (sr(sCtl), sr(sGrp)))
    a("s_add_u32 %s, %s, 0x%x" % (sr(sCtl), sr(sCtl), CTL_OFF))
    a("s_or_b32 %s, %s, %s" % (sr(sInit), sr(sW), sr(sSpl)))
    a("s_waitcnt lgkmcnt(0)")
    if diag:
        stamp_real(1)
    a("s_add_u32 %s, %s, %s" % (sr(srdK), sr(sK), sr(sTmp)))
    a("s_addc_u32 %s, %s, 0" % (sr(srdK + 1), sr(sK + 1)))
    a("s_add_u32 %s, %s, %s" % (sr(srdV), sr(sV), sr(sTmp)))
    a("s_addc_u32 %s, %s, 0" % (sr(srdV + 1), sr(sV + 1)))
    a("s_mov_b32 %s, %s" % (sr(srdQ), sr(sQ)))
    a("s_mov_b32 %s, %s" % (sr(srdQ + 1), sr(sQ + 1)))

    RMASK = N * U - 1

    def refill_v():
        a("s_or_b32 m0, %s, 0x%x" % (sr(sM0V), VBASE))
        a("s_mov_b32 %s, %s" % (sr(sM0V), sr(sM0K)))
        dma_v()

    def refill_k_static():
        a("s_mov_b32 m0, %s" % sr(sM0K))
        a("s_mov_b32 %s, %s" % (sr(sOffV), sr(sOffK)))
        dma_k()
        a("s_add_u32 %s, %s, %d" % (sr(sM0K), sr(sM0K), U))
        a("s_add_u32 %s, %s, %d" % (sr(sOffK), sr(sOffK), tstride))
        a("s_and_b32 %s, %s, 0x%x" % (sr(sM0K), sr(sM0K), RMASK))

    def refill_k_dyn(ds):
        if ds is not None:
            ds.need([("CLAIM",)])
        a("v_readfirstlane_b32 %s, %s" % (sr(sR), vr(vR)))
        a("s_add_u32 %s, %s, 2" % (sr(sJ), sr(sT)))
        a("s_mov_b32 m0, %s" % sr(sM0K))
        a("s_add_u32 %s, %s, %s" % (sr(sR), sr(sR), sr(sDynBase)))
        a("s_lshl_b32 %s, %s, 14" % (sr(sR), sr(sR)))
        a("s_cmp_lt_u32 %s, %d" % (sr(sJ), S))
        a("s_cselect_b32 %s, %s, %s" % (sr(sOffK), sr(sStat), sr(sR)))
        dma_k()
        a("s_add_u32 %s, %s, %d" % (sr(sStat), sr(sStat), tstride))
        a("s_cmp_ge_u32 %s, %s" % (sr(sOffK), sr(srdK + 2)))
        a("s_cselect_b32 %s, %s, %s" % (sr(sJ), sr(sJ), sr(sEnd)))
        a("s_min_u32 %s, %s, %s" % (sr(sEnd), sr(sEnd), sr(sJ)))
        a("s_mov_b32 %s, %s" % (sr(sOffV), sr(sOffK)))
        a("s_add_u32 %s, %s, %d" % (sr(sM0K), sr(sM0K), U))
        a("s_and_b32 %s, %s, 0x%x" % (sr(sM0K), sr(sM0K), RMASK))

    a("s_mov_b32 %s, %s" % (sr(srdW), sr(sWs)))
    a("s_mov_b32 %s, %s" % (sr(srdW + 1), sr(sWs + 1)))
    for j in range(4):
        a("buffer_load_dwordx4 %s, v7, %s, %s offen offset:%d" % (vr(vQ + 4 * j, 4), sr(srdQ, 4), sr(sTmp2), j * 64))
    a("s_cmp_lg_u32 %s, 0" % sr(sInit))
    a("s_cbranch_scc1 L_nohdr")
    a("s_mov_b64 exec, 1")
    a("buffer_load_dword %s, off, %s, %s offset:4 sc1" % (vr(vH), sr(srdW, 4), sr(sCtl)))
    a("s_mov_b64 exec, -1")
    a.label("L_nohdr")

    a.label("L_fill")
    refill_v()
    refill_k_static()
    a("s_sub_u32 %s, %s, 1" % (sr(sT), sr(sT)))
    a("s_cmp_lg_u32 %s, 0" % sr(sT))
    a("s_cbranch_scc1 L_fill")
    if diag:
        stamp_real(2)
    a("v_lshlrev_b32 v6, 8, v2")
    a("v_or_b32 %s, v6, v4" % vr(vKa))
    for j in range(1, 4):
        a("v_xor_b32 %s, %d, %s" % (vr(vKa + j), j << 6, vr(vKa)))
    a("v_lshrrev_b32 v5, 2, v2")
    a("v_lshl_or_b32 v5, v3, 2, v5")
    a("v_and_b32 v6, 7, v5")
    a("v_lshlrev_b32 v6, 5, v6")
    a("v_lshl_or_b32 v6, v5, 8, v6")
    a("v_and_b32 v5, 3, v2")
    a("v_lshl_or_b32 v6, v5, 3, v6")
    for db in range(8):
        a("v_xor_b32 v5, %d, v6" % (db << 5))
        a("v_add_u32 %s, %d, v5" % (vr(vVa + db), VBASE + (N - 1) * U))
    for k in range(32):
        a("v_mov_b32 %s, 0" % vr(vO + k))
    for k in range(8):
        a("v_mov_b32 %s, 0" % vr(vP + k))
    a("v_mov_b32 %s, 0xff800000" % vr(vMC))
    a("v_mov_b32 %s, 0" % vr(vL))
    a("v_mov_b32 %s, 1" % vr(vC))
    a("v_mov_b32 %s, 0x%x" % (vr(vLq), LDSQ))
    a("s_mov_b32 %s, 0x%08x" % (sr(sC), f2u(cscale)))
    a("s_mov_b32 %s, 0x%08x" % (sr(sThr), f2u(thr)))
    a("s_mov_b32 %s, 0" % sr(sT))
    a("s_mov_b32 %s, %d" % (sr(sDNeg), -(N - 1) * U))
    a("s_mov_b32 %s, %d" % (sr(sDPos), U))
    a("s_mov_b32 %s, %d" % (sr(sDV), -(N - 1) * U))
    a("s_mov_b32 %s, %s" % (sr(srdO), sr(sOut)))
    a("s_mov_b32 %s, %s" % (sr(srdO + 1), sr(sOut + 1)))
    a("s_mov_b32 %s, 0x100000" % sr(srdO + 2))
    a("s_mov_b32 %s, 0x20000" % sr(srdO + 3))
    a("s_mov_b32 %s, %s" % (sr(srdD), sr(sDbg)))
    a("s_mov_b32 %s, %s" % (sr(srdD + 1), sr(sDbg + 1)))
    a("s_mov_b32 %s, 256" % sr(srdD + 2))
    a("s_mov_b32 %s, 0x20000" % sr(srdD + 3))
    a("s_lshl_b32 %s, %s, 2" % (sr(sDbgOff), sr(sGrp)))
    a("s_mov_b32 %s, 0" % sr(sEvt))
    a("s_mov_b32 %s, %d" % (sr(sEnd), 32 if not dyn else S + POOL + 1))
    a("s_mov_b32 %s, %s" % (sr(sStat), sr(sOffK)))
    a("s_sub_u32 %s, %d, %s" % (sr(sDynBase), 4 * S, sr(sSpl)))
    a("s_cmp_eq_u32 %s, 0" % sr(sW))
    a("s_cselect_b32 %s, %d, -1" % (sr(sDyn), S - 5))
    if diag:
        a("v_mov_b32 %s, 0" % vr(vDg1))
        a("v_mov_b32 %s, 0" % vr(vDg2))
        a("s_mov_b32 s60, 0")
        stamp_real(3)

    ds = DS(a)
    Sg = lambda k: vr(vS + k)
    X = lambda k: vr(vX + k)
    t = lambda k: vr(vT + k)

    def qk1(kb, j):
        ds.need([("K", kb, j)])
        a("v_mfma_f32_16x16x32_bf16 %s, %s, %s, %s" % (vr(vS + 4 * kb, 4), vr(vK + 16 * kb + 4 * j, 4), vr(vQ + 4 * j, 4),
                                                     "0" if j == 0 else vr(vS + 4 * kb, 4)))

    def vread(db, s):
        b = vV + 8 * db + 4 * s
        ds.issue("ds_read_b64_tr_b16 %s, %s offset:%d" % (vr(b, 2), vr(vVa + db), (2 * s) * 4096), ("V", db, s, 0))
        ds.issue("ds_read_b64_tr_b16 %s, %s offset:%d" % (vr(b + 2, 2), vr(vVa + db), (2 * s + 1) * 4096), ("V", db, s, 1))

    def pv1(db, s):
        ds.need([("V", db, s, 1)])
        a("v_mfma_f32_16x16x32_bf16 %s, %s, %s, %s" % (vr(vO + 4 * db, 4), vr(vV + 8 * db + 4 * s, 4), vr(vP + 4 * s, 4), vr(vO + 4 * db, 4)))

    def sm_fma(k):
        a("v_fma_f32 %s, %s, %s, -%s" % (X(k), Sg(k), sr(sC), vr(vMC)))

    def sm_exp(k):
        a("v_exp_f32 %s, %s" % (X(k), X(k)))

    def cvt(k):
        a("v_cvt_pk_bf16_f32 %s, %s, %s" % (vr(vP + k), X(2 * k), X(2 * k + 1)))

    a.label("L_loop")
    a("s_waitcnt vmcnt(%d)" % VM)
    if dyn:
        a("s_cmp_ge_u32 %s, %s" % (sr(sT), sr(sDyn)))
        a("s_cbranch_scc0 L_nb")
        a("s_sub_u32 %s, %s, %d" % (sr(sTmp), sr(sT), S - 3))
        a("s_lshl_b64 exec, 1, %s" % sr(sTmp))
        a("ds_write_b32 %s, %s" % (vr(vLq), vr(vC)))
        a("s_mov_b64 exec, -1")
        a("s_waitcnt lgkmcnt(0)")
        a.label("L_nb")
    a("s_barrier")
    if dyn:
        ds.issue("ds_read_b32 %s, %s" % (vr(vR), vr(vLq)), ("CLAIM",))
    a("s_cmp_eq_u32 %s, %s" % (sr(sT), sr(sEvt)))
    a("s_cbranch_scc1 L_svc")
    a.label("L_svcret")
    if dyn:
        a("s_cmp_ge_u32 %s, %s" % (sr(sT), sr(sDyn)))
        a("s_cbranch_scc0 L_na")
        a("s_sub_u32 %s, %s, %d" % (sr(sTmp), sr(sT), S - 5))
        a("s_lshl_b64 exec, 1, %s" % sr(sTmp))
        a("buffer_atomic_add %s, off, %s, %s sc0" % (vr(vC), sr(srdW, 4), sr(sCtl)))
        a("s_mov_b64 exec, -1")
        a.label("L_na")
    if diag:
        stamp_tile()
        a("s_cmp_lg_u32 %s, 0" % sr(sT))
        a("s_cbranch_scc1 L_nost")
        stamp_real(4)
        a.label("L_nost")
    a("s_add_u32 %s, %s, 1" % (sr(sT), sr(sT)))
    refill_k = (lambda: refill_k_dyn(ds)) if dyn else refill_k_static
    if nocompute:
        refill_v()
        refill_k()
        if dyn:
            a("v_xor_b32 %s, 4, %s" % (vr(vLq), vr(vLq)))
        ds.done = len(ds.q)
        ds.reset()
    else:
        units = [("K", 0, j) for j in range(4)] + [("K", 1, j) for j in range(4)] + [("V", db, 0) for db in range(8)] + \
                [("K", 2, j) for j in range(4)] + [("K", 3, j) for j in range(4)] + [("V", db, 1) for db in range(8)]

        def issue(u):
            if u >= 32:
                return
            kind, x, y = units[u]
            if kind == "K":
                ds.issue("ds_read_b128 %s, %s offset:%d" % (vr(vK + 16 * x + 4 * y, 4), vr(vKa + y), x * 4096), ("K", x, y))
            else:
                vread(x, y)

        def tag(u):
            kind, x, y = units[u]
            return ("K", x, y) if kind == "K" else ("V", x, y, 1)

        def mfma(u):
            kind, x, y = units[u]
            if u % 2 == 0:
                ds.need([tag(u + 1)])
            if kind == "K":
                qk1(x, y)
            else:
                pv1(x, y)

        def padd(d, x, y):
            a("v_add_f32 %s, %s, %s" % (d, x, y))

        D = DIST
        for u in range(D):
            issue(u)
        refill_v()
        a("s_and_b32 %s, %s, %d" % (sr(sTmp), sr(sT), N - 1))
        a("s_cselect_b32 %s, %s, %s" % (sr(sDK), sr(sDPos), sr(sDNeg)))
        fill = {i: [] for i in range(33)}
        F = lambda i, fn, *args: fill[i].append((fn, args))
        for h, base in ((0, 8), (1, 24)):
            k0 = 8 * h
            for m in range(8):
                F(base + m, sm_fma, k0 + m)
                F(base + m + 1, sm_exp, k0 + m)
        F(17, padd, t(0), X(0), X(1)); F(17, padd, t(1), X(2), X(3))
        F(18, padd, t(2), X(4), X(5)); F(18, padd, t(3), X(6), X(7))
        F(19, cvt, 0); F(19, cvt, 1)
        F(20, cvt, 2); F(20, cvt, 3)
        F(21, padd, t(0), t(0), t(1)); F(21, padd, t(2), t(2), t(3))
        F(22, padd, t(0), t(0), t(2))
        def kadd(j):
            a("v_add_u32 %s, %s, %s" % (vr(vKa + j), sr(sDK), vr(vKa + j)))
        def vadd(db):
            a("v_add_u32 %s, %s, %s" % (vr(vVa + db), sr(sDV), vr(vVa + db)))
        lastK = max(u for u in range(32) if units[u][0] == "K") - D
        for j in range(4):
            F(lastK + 1 + j // 2, kadd, j)
        for db in range(8):
            F(24 - D + db + 1 if 24 - D + db + 1 <= 32 else 32, vadd, db)
        F(kslot, refill_k)
        if dyn:
            F(kslot + 1, lambda: a("v_xor_b32 %s, 4, %s" % (vr(vLq), vr(vLq))))
        for u in range(32):
            mfma(u)
            issue(u + D)
            for fn, args in fill[u]:
                fn(*args)
        for fn, args in fill[32]:
            fn(*args)
        padd(t(1), X(8), X(9))
        padd(t(2), X(10), X(11))
        padd(t(3), X(12), X(13))
        cvt(4); cvt(5)
        padd(t(4), X(14), X(15))
        padd(t(0), t(0), t(1))
        padd(t(2), t(2), t(3))
        cvt(6)
        padd(t(0), t(0), t(4))
        cvt(7)
        padd(t(0), t(0), t(2))
        a("v_cmp_nge_f32 vcc, %s, %s" % (sr(sThr), t(0)))
        a("s_mov_b32 %s, %s" % (sr(sDV), sr(sDK)))
        a("s_cbranch_vccnz L_slow")
        a.label("L_back")
        a("v_add_f32 %s, %s, %s" % (vr(vL), vr(vL), t(0)))
        ds.reset()
    a("s_cmp_lt_u32 %s, %s" % (sr(sT), sr(sEnd)))
    a("s_cbranch_scc1 L_loop")

    RS = vK
    R = vV
    vTagV = 7
    sPubA, sPubB, sSel, sFF = 44, 45, 50, 51
    sInD, sInM = [46, 47, 92], [93, 94, 95]
    a("v_mov_b32 %s, %s" % (t(1), vr(vL)))
    a("v_mov_b32 %s, %s" % (vr(vTagV), sr(sTag)))
    a("v_permlane32_swap_b32 %s, %s" % (t(1), vr(vL)))
    a("s_lshl_b32 %s, %s, 2" % (sr(sTmp), sr(sGrp)))
    a("s_add_u32 %s, %s, %s" % (sr(sTmp2), sr(sTmp), sr(sW)))
    a("v_add_f32 %s, %s, %s" % (vr(vL), vr(vL), t(1)))
    a("s_lshl_b32 %s, %s, 2" % (sr(sTmp2), sr(sTmp2)))
    a("v_mov_b32 %s, %s" % (t(1), vr(vL)))
    a("s_add_u32 %s, %s, %s" % (sr(sTmp2), sr(sTmp2), sr(sSpl)))
    a("s_mul_i32 %s, %s, %d" % (sr(sPubA), sr(sTmp2), WSLOT))
    a("v_permlane16_swap_b32 %s, %s" % (t(1), vr(vL)))
    a("s_add_u32 %s, %s, 4096" % (sr(sPubB), sr(sPubA)))
    a("s_add_u32 %s, %s, %s" % (sr(sTmp2), sr(sTmp), sr(sSpl)))
    a("v_add_f32 %s, %s, %s" % (t(1), vr(vL), t(1)))
    a("v_mov_b32 %s, %s" % (t(0), vr(vMC)))
    a("v_mov_b32 %s, %s" % (t(2), sr(sTag)))
    a("v_mov_b32 %s, %s" % (t(3), sr(sTag)))
    a("s_mul_i32 %s, %s, %d" % (sr(sTmp2), sr(sTmp2), 4 * WSLOT))
    a("s_lshl_b32 %s, %s, 11" % (sr(sTmp), sr(sW)))
    for k in range(1, 4):
        a("s_add_u32 %s, %s, %d" % (sr(sR), sr(sSpl), k))
        a("s_and_b32 %s, %s, 3" % (sr(sR), sr(sR)))
        a("s_mul_i32 %s, %s, %d" % (sr(sR), sr(sR), WSLOT))
        a("s_add_u32 %s, %s, %s" % (sr(sInM[k - 1]), sr(sTmp2), sr(sR)))
        a("s_add_u32 %s, %s, %s" % (sr(sInD[k - 1]), sr(sInM[k - 1]), sr(sTmp)))
    a("v_lshlrev_b32 v2, 4, v0")
    a("v_and_b32 v5, 15, v0")
    a("v_lshlrev_b32 v3, 4, v5")
    a("v_add_u32 v3, 8192, v3")
    a("v_add_u32 v4, 0x%x, v2" % SELF)
    a("v_lshlrev_b32 v6, 3, v5")
    a("v_add_u32 v6, 0x%x, v6" % (SELF + 8192))
    a("s_mov_b32 %s, 0x07060500" % sr(sSel))
    a("s_mov_b32 %s, 0xff" % sr(sFF))
    a("s_waitcnt vmcnt(%d)" % (VM + 4))
    a("s_barrier")
    if not nocompute:
        for db in range(3):
            vread(db, 0); vread(db, 1)
        for db in range(8):
            pv1(db, 0); pv1(db, 1)
            if db + 3 < 8:
                vread(db + 3, 0); vread(db + 3, 1)
        ds.reset()

    if diag:
        stamp_real(5)
        a("s_add_u32 s62, %s, 63" % sr(sT))
        a("s_lshl_b64 exec, 1, s62")
        a("v_mov_b32 %s, s60" % vr(vDg1))
        a("s_mov_b64 exec, -1")
    a("s_cmp_eq_u32 %s, %s" % (sr(sW), sr(sSpl)))
    a("s_cbranch_scc1 L_self")
    for n in range(8):
        for k in range(4):
            a("v_perm_b32 %s, %s, %s, %s" % (vr(vO + 4 * n + k), vr(vO + 4 * n + k), vr(vTagV), sr(sSel)))
        a("buffer_store_dwordx4 %s, v2, %s, %s offen offset:%d sc1" % (vr(vO + 4 * n, 4), sr(srdW, 4), sr(sPubA if n < 4 else sPubB), (n & 3) * 1024))
    a("s_mov_b64 exec, 0xffff")
    a("buffer_store_dwordx4 %s, v3, %s, %s offen sc1" % (vr(vT, 4), sr(srdW, 4), sr(sPubA)))
    a("s_mov_b64 exec, -1")
    a("s_branch L_pubd")
    a.label("L_self")
    a("s_nop 7")
    for n in range(8):
        a("ds_write_b128 v4, %s offset:%d" % (vr(vO + 4 * n, 4), n * 1024))
    a("s_mov_b64 exec, 0xffff")
    a("ds_write_b64 v6, %s" % vr(vT, 2))
    a("s_mov_b64 exec, -1")
    a("s_waitcnt lgkmcnt(0)")
    a.label("L_pubd")
    if diag:
        stamp_real(6)
    sMask, sCnt = 48, 49
    a("s_mov_b32 %s, 14" % sr(sMask))
    a("s_mov_b32 %s, 0" % sr(sCnt))
    a("s_lshl_b32 %s, %s, 11" % (sr(sTmp), sr(sW)))
    a("v_add_u32 v4, %s, v4" % sr(sTmp))
    a.label("L_poll")
    for k in range(1, 4):
        a("s_bitcmp1_b32 %s, %d" % (sr(sMask), k))
        a("s_cbranch_scc0 L_pl%d" % k)
        rb = R + 12 * (k - 1)
        for e in range(2):
            a("buffer_load_dwordx4 %s, v2, %s, %s offen offset:%d sc1" % (vr(rb + 4 * e, 4), sr(srdW, 4), sr(sInD[k - 1]), e * 1024))
        a("buffer_load_dwordx4 %s, v3, %s, %s offen sc1" % (vr(rb + 8, 4), sr(srdW, 4), sr(sInM[k - 1])))
        a.label("L_pl%d" % k)
    a("s_cmp_lg_u32 %s, 0" % sr(sCnt))
    a("s_cbranch_scc1 L_pw")
    a("s_barrier")
    a("ds_read_b128 %s, v4" % vr(RS, 4))
    a("ds_read_b128 %s, v4 offset:1024" % vr(RS + 4, 4))
    a("ds_read_b64 %s, v6" % vr(RS + 8, 2))
    a("v_and_b32 v5, 15, v0")
    a("v_lshrrev_b32 v6, 4, v0")
    a("v_lshlrev_b32 v5, 8, v5")
    a("v_lshl_or_b32 v5, v6, 3, v5")
    a("s_lshl_b32 %s, %s, 6" % (sr(sTmp), sr(sW)))
    a("v_add_u32 v5, %s, v5" % sr(sTmp))
    a("s_lshl_b32 %s, %s, 14" % (sr(sTmp), sr(sGrp)))
    a("s_lshl_b32 %s, %s, 12" % (sr(sTmp2), sr(sSpl)))
    a("s_add_u32 %s, %s, %s" % (sr(sTmp), sr(sTmp), sr(sTmp2)))
    a.label("L_pw")
    a("s_add_u32 %s, %s, 1" % (sr(sCnt), sr(sCnt)))
    a("s_waitcnt vmcnt(0)")
    for k in range(1, 4):
        rb = R + 12 * (k - 1)
        for j in range(8):
            a("v_xor_b32 %s, %s, %s" % (vr(vX + j), vr(vTagV), vr(rb + j)))
        a("v_xor_b32 %s, %s, %s" % (vr(vX + 8), vr(vTagV), vr(rb + 10)))
        a("v_or3_b32 %s, %s, %s, %s" % (vr(vX), vr(vX), vr(vX + 1), vr(vX + 2)))
        a("v_or3_b32 %s, %s, %s, %s" % (vr(vX + 3), vr(vX + 3), vr(vX + 4), vr(vX + 5)))
        a("v_or3_b32 %s, %s, %s, %s" % (vr(vX), vr(vX), vr(vX + 6), vr(vX + 7)))
        a("v_or_b32 %s, %s, %s" % (vr(vX), vr(vX), vr(vX + 3)))
        a("v_and_or_b32 %s, %s, %s, %s" % (vr(vX), vr(vX), sr(sFF), vr(vX + 8)))
        a("v_cmp_ne_u32 vcc, 0, %s" % vr(vX))
        a("s_cbranch_vccnz L_pm%d" % k)
        a("s_bitset0_b32 %s, %d" % (sr(sMask), k))
        a.label("L_pm%d" % k)
    a("s_cmp_ge_u32 %s, 0x8000" % sr(sCnt))
    a("s_cbranch_scc1 L_polled")
    a("s_cmp_lg_u32 %s, 0" % sr(sMask))
    a("s_cbranch_scc1 L_poll")
    a.label("L_polled")
    if diag:
        stamp_real(7)
    a("s_waitcnt lgkmcnt(0)")
    mm = lambda k: vr(RS + 8) if k == 0 else vr(R + 12 * (k - 1) + 8)
    ll = lambda k: vr(RS + 9) if k == 0 else vr(R + 12 * (k - 1) + 9)
    dd = lambda k, j: vr(RS + j) if k == 0 else vr(R + 12 * (k - 1) + j)
    a("v_max3_f32 %s, %s, %s, %s" % (t(0), mm(0), mm(1), mm(2)))
    a("v_max_f32 %s, %s, %s" % (t(0), t(0), mm(3)))
    for k in range(4):
        a("v_sub_f32 %s, %s, %s" % (mm(k), mm(k), t(0)))
    for k in range(4):
        a("v_exp_f32 %s, %s" % (mm(k), mm(k)))
    a("v_mul_f32 %s, %s, %s" % (t(1), mm(0), ll(0)))
    for k in range(1, 4):
        a("v_fma_f32 %s, %s, %s, %s" % (t(1), mm(k), ll(k), t(1)))
    a("v_rcp_f32 %s, %s" % (t(1), t(1)))
    for j in range(8):
        a("v_mul_f32 %s, %s, %s" % (vr(vS + j), mm(0), dd(0, j)))
    for k in range(1, 4):
        for j in range(8):
            a("v_fma_f32 %s, %s, %s, %s" % (vr(vS + j), mm(k), dd(k, j), vr(vS + j)))
    for j in range(8):
        a("v_mul_f32 %s, %s, %s" % (vr(vS + j), t(1), vr(vS + j)))
    for k in range(4):
        a("v_cvt_pk_bf16_f32 %s, %s, %s" % (vr(vP + k), vr(vS + 2 * k), vr(vS + 2 * k + 1)))
    for e in range(2):
        a("buffer_store_dwordx2 %s, v5, %s, %s offen offset:%d" % (vr(vP + 2 * e, 2), sr(srdO, 4), sr(sTmp), e * 32))
    if diag:
        stamp_real(8)
        a("s_waitcnt lgkmcnt(0)")
        for idx in range(9):
            a("s_lshl_b64 exec, 1, %d" % idx)
            a("v_mov_b32 %s, s%d" % (vr(vDg2), 64 + 2 * idx))
        a("s_lshl_b64 exec, 1, 12")
        a("v_mov_b32 %s, %s" % (vr(vDg2), sr(sT)))
        a("s_lshl_b64 exec, 1, 13")
        a("v_mov_b32 %s, %s" % (vr(vDg2), sr(sCnt)))
        a("s_getreg_b32 s60, hwreg(HW_REG_XCC_ID)")
        a("s_lshl_b64 exec, 1, 14")
        a("v_mov_b32 %s, s60" % vr(vDg2))
        a("s_getreg_b32 s60, hwreg(HW_REG_HW_ID)")
        a("s_lshl_b64 exec, 1, 15")
        a("v_mov_b32 %s, s60" % vr(vDg2))
        a("s_mov_b64 exec, -1")
        a("s_lshl_b32 s60, s2, 2")
        a("s_add_u32 s60, s60, %s" % sr(sW))
        a("s_lshl_b32 s60, s60, 9")
        a("s_add_u32 s60, s60, 0x1000000")
        a("v_lshlrev_b32 v1, 2, v0")
        a("buffer_store_dword %s, v1, %s, s60 offen" % (vr(vDg1), sr(srdW, 4)))
        a("buffer_store_dword %s, v1, %s, s60 offen offset:256" % (vr(vDg2), sr(srdW, 4)))
    a.label("L_done")
    a("s_endpgm")

    a.label("L_svc")
    a("s_cmp_eq_u32 %s, 0" % sr(sT))
    a("s_cbranch_scc1 L_svcB")
    a("s_cmp_eq_u32 %s, 3" % sr(sT))
    a("s_cbranch_scc1 L_svcC")
    a("s_cmp_eq_u32 %s, %d" % (sr(sT), D0))
    a("s_cbranch_scc1 L_svcD")
    a("s_mov_b32 %s, -1" % sr(sEvt))
    a("v_readfirstlane_b32 %s, %s" % (sr(sTag), vr(vH)))
    a("s_mov_b32 %s, 0" % sr(sTmp))
    a("s_cmp_lg_u32 %s, 0" % sr(sTag))
    a("s_cbranch_scc1 L_svcret")
    a.label("L_spin")
    a("buffer_load_dword %s, off, %s, %s sc1" % (vr(vH), sr(srdD, 4), sr(sDbgOff)))
    a("s_add_u32 %s, %s, 1" % (sr(sTmp), sr(sTmp)))
    a("s_waitcnt vmcnt(0)")
    a("v_readfirstlane_b32 %s, %s" % (sr(sTag), vr(vH)))
    a("s_cmp_ge_u32 %s, 0x8000" % sr(sTmp))
    a("s_cbranch_scc1 L_svcret")
    a("s_cmp_eq_u32 %s, 0" % sr(sTag))
    a("s_cbranch_scc1 L_spin")
    a("s_branch L_svcret")
    a.label("L_svcB")
    a("s_mov_b32 %s, 3" % sr(sEvt))
    a("s_cmp_lg_u32 %s, 0" % sr(sInit))
    a("s_cbranch_scc1 L_svcret")
    a("v_readfirstlane_b32 %s, %s" % (sr(sTag), vr(vH)))
    a("v_mov_b32 %s, 0" % vr(vPair))
    a("s_add_u32 %s, %s, 1" % (sr(sTag), sr(sTag)))
    a("s_addc_u32 %s, %s, 0" % (sr(sTag), sr(sTag)))
    a("v_mov_b32 %s, %s" % (vr(vPair + 1), sr(sTag)))
    a("s_mov_b64 exec, 1")
    a("buffer_store_dwordx2 %s, off, %s, %s sc1" % (vr(vPair, 2), sr(srdW, 4), sr(sCtl)))
    a("s_mov_b64 exec, -1")
    a("s_branch L_svcret")
    a.label("L_svcC")
    a("s_mov_b32 %s, %d" % (sr(sEvt), D0))
    a("s_cmp_lg_u32 %s, 0" % sr(sInit))
    a("s_cbranch_scc1 L_svcret")
    a("s_mov_b64 exec, 1")
    a("buffer_store_dword %s, off, %s, %s sc1" % (vr(vPair + 1), sr(srdD, 4), sr(sDbgOff)))
    a("s_mov_b64 exec, -1")
    a("s_branch L_svcret")
    a.label("L_svcD")
    a("s_mov_b32 %s, %d" % (sr(sEvt), D0 + 3))
    a("s_mov_b64 exec, 1")
    a("buffer_load_dword %s, off, %s, %s sc1" % (vr(vH), sr(srdD, 4), sr(sDbgOff)))
    a("s_mov_b64 exec, -1")
    a("s_branch L_svcret")

    if not nocompute:
        a.label("L_slow")
        a("s_nop 7")
        a("v_max3_f32 %s, %s, %s, %s" % (t(0), Sg(0), Sg(1), Sg(2)))
        a("v_max3_f32 %s, %s, %s, %s" % (t(1), Sg(3), Sg(4), Sg(5)))
        a("v_max3_f32 %s, %s, %s, %s" % (t(2), Sg(6), Sg(7), Sg(8)))
        a("v_max3_f32 %s, %s, %s, %s" % (t(0), t(0), Sg(9), Sg(10)))
        a("v_max3_f32 %s, %s, %s, %s" % (t(1), t(1), Sg(11), Sg(12)))
        a("v_max3_f32 %s, %s, %s, %s" % (t(2), t(2), Sg(13), Sg(14)))
        a("v_max3_f32 %s, %s, %s, %s" % (t(0), t(0), t(1), Sg(15)))
        a("v_max_f32 %s, %s, %s" % (t(0), t(0), t(2)))
        a("v_mov_b32 %s, %s" % (t(1), t(0)))
        a("v_permlane32_swap_b32 %s, %s" % (t(1), t(0)))
        a("v_max_f32 %s, %s, %s" % (t(0), t(0), t(1)))
        a("v_mov_b32 %s, %s" % (t(1), t(0)))
        a("v_permlane16_swap_b32 %s, %s" % (t(1), t(0)))
        a("v_max_f32 %s, %s, %s" % (t(0), t(0), t(1)))
        a("v_mul_f32 %s, %s, %s" % (t(0), sr(sC), t(0)))
        a("v_max_f32 %s, %s, %s" % (t(0), t(0), vr(vMC)))
        a("v_sub_f32 %s, %s, %s" % (t(1), vr(vMC), t(0)))
        a("v_mov_b32 %s, %s" % (vr(vMC), t(0)))
        a("v_exp_f32 %s, %s" % (vr(vAl), t(1)))
        for k in range(16):
            sm_fma(k)
        for k in range(16):
            sm_exp(k)
        a("v_mul_f32 %s, %s, %s" % (vr(vL), vr(vAl), vr(vL)))
        for k in range(32):
            a("v_mul_f32 %s, %s, %s" % (vr(vO + k), vr(vAl), vr(vO + k)))
        a("v_add_f32 %s, %s, %s" % (t(0), X(0), X(1)))
        for k in range(2, 16):
            a("v_add_f32 %s, %s, %s" % (t(0), t(0), X(k)))
        for k in range(8):
            cvt(k)
        a("s_branch L_back")

    loops = [("L_loop", "s_cbranch_scc1 L_loop"), ("L_poll", "s_cbranch_scc1 L_poll"), ("L_fill", "s_cbranch_scc1 L_fill"),
             ("L_spin", "s_cbranch_scc1 L_spin")]
    body, nadd = pad_hazards(a.lines, loops=loops)
    out = []
    out.append("; params: N=%d pol=%r wgmap=%d dyn=%d S=%d diag=%d nocompute=%d" % (N, pol, wgmap, dyn, S, diag, nocompute))
    out.append("; @launch grid=(256,1,1) block=(256,1,1) lds=%d" % LDS)
    out.append('.amdgcn_target "amdgcn-amd-amdhsa--gfx950"')
    out.append(".text")
    out.append(".globl %s_kernel" % NAME)
    out.append(".p2align 8")
    out.append(".type %s_kernel,@function" % NAME)
    out.append("%s_kernel:" % NAME)
    for ln in body:
        out.append(ln if ln.endswith(":") else "    " + ln)
    out.append('.section .rodata,"a"')
    out.append(".p2align 6")
    out.append(".amdhsa_kernel %s_kernel" % NAME)
    out.append("  .amdhsa_next_free_vgpr 256")
    out.append("  .amdhsa_next_free_sgpr 96")
    out.append("  .amdhsa_accum_offset 256")
    out.append("  .amdhsa_group_segment_fixed_size 0")
    out.append("  .amdhsa_kernarg_size 48")
    out.append("  .amdhsa_user_sgpr_count 2")
    out.append("  .amdhsa_user_sgpr_kernarg_segment_ptr 1")
    out.append("  .amdhsa_system_sgpr_workgroup_id_x 1")
    out.append(".end_amdhsa_kernel")
    return "\n".join(out) + "\n", nadd


if __name__ == "__main__":
    ap = argparse.ArgumentParser()
    ap.add_argument("-o", default="cdna_kernels/%s.s" % NAME)
    ap.add_argument("--pol", default="nt")
    ap.add_argument("--wgmap", type=int, default=2)
    ap.add_argument("--diag", type=int, default=0)
    ap.add_argument("--nocompute", type=int, default=0)
    ap.add_argument("--polv", default=None)
    ap.add_argument("--dist", type=int, default=7)
    ap.add_argument("--dyn", type=int, default=1)
    ap.add_argument("--S", type=int, default=20)
    ap.add_argument("--kslot", type=int, default=2)
    ap.add_argument("--pollall", type=int, default=0)
    ap.add_argument("--xg", type=int, default=3)
    args = ap.parse_args()
    txt, nadd = gen(pol=args.pol, wgmap=args.wgmap, diag=args.diag, nocompute=args.nocompute, DIST=args.dist, polv=args.polv,
                    dyn=args.dyn, S=args.S, kslot=args.kslot, pollall=args.pollall, xg=args.xg)
    open(args.o, "w").write(txt)
    print("wrote", args.o, "nops inserted:", nadd, "lines:", txt.count("\n"))
```

```python
import argparse, math, struct
from asmlib import Asm, pad_hazards

NAME = "standalone__gqa_softmax__sampling"


def vr(b, n=1):
    return "v%d" % b if n == 1 else "v[%d:%d]" % (b, b + n - 1)


def sr(b, n=1):
    return "s%d" % b if n == 1 else "s[%d:%d]" % (b, b + n - 1)


class DS:
    def __init__(self, a):
        self.a = a
        self.q = []
        self.done = 0

    def issue(self, text, tag):
        self.a(text)
        self.q.append(tag)

    def need(self, tags):
        idx = max(i for i, t in enumerate(self.q) if t in tags)
        if idx < self.done:
            return
        n = min(len(self.q) - 1 - idx, 14)
        self.a("s_waitcnt lgkmcnt(%d)" % n)
        self.done = len(self.q) - n

    def reset(self):
        assert self.done == len(self.q), (self.done, len(self.q))
        self.q = []
        self.done = 0


def gen(N=4, pol="nt", wgmap=2, diag=0, nocompute=0, thr=256.0, DIST=7, polv=None, dyn=1, S=20, kslot=2, pollall=0, xg=3, opol=''):
    a = Asm()
    assert N == 4
    if not dyn:
        S = 32
    POOL = 128 - 4 * S
    D0 = 11 if not dyn else min(11, S - 9)
    assert D0 >= 5
    U = 16384
    KBASE, VBASE = 0, N * U
    LDSQ = 2 * N * U
    SELF = 2 * N * U + 64
    LDS = SELF + 8192 + 128
    VM = 8 * (N - 2)
    sQ, sK, sV, sOut, sDbg, sWs = 4, 6, 8, 10, 12, 14
    srdK, srdV, srdQ, srdW, srdO, srdD = 16, 20, 24, 28, 32, 36
    sW, sGrp, sSpl, sT = 40, 41, 42, 43
    sOffK, sOffV, sM0K, sM0V = 44, 45, 46, 47
    sDK, sDV, sC, sTmp, sTmp2, sThr = 48, 49, 50, 52, 53, 54
    sW4 = 58
    sDNeg, sDPos = 59, 63
    sEvt, sTag, sEnd, sDyn, sR, sInit, sStat, sDynBase, sCtl, sDbgOff, sJ = 82, 83, 84, 85, 86, 87, 88, 89, 90, 91, 92
    vC, vLq, vR, vH, vPair = 1, 3, 4, 27, 6
    vKoff, vVoff, vKa, vVa = 8, 12, 14, 18
    vMC, vL, vAl = 26, 28, 29
    vT = 30
    vDg1, vDg2 = 38, 39
    vQ, vS, vP, vO, vK, vV, vX = 40, 56, 72, 80, 112, 176, 240
    WSLOT = 8448
    CTL_OFF = 12 << 20
    cscale = (128 ** -0.5) * math.log2(math.e)
    f2u = lambda x: struct.unpack("<I", struct.pack("<f", x))[0]
    tstride = 65536
    polk = (" " + pol) if pol else ""
    polv_ = polk if polv is None else ((" " + polv) if polv else "")

    def stamp_real(idx):
        a("s_memrealtime s[%d:%d]" % (64 + 2 * idx, 65 + 2 * idx))

    def stamp_tile():
        a("s_add_u32 s62, %s, 63" % sr(sT))
        a("s_lshl_b64 exec, 1, s62")
        a("v_mov_b32 %s, s60" % vr(vDg1))
        a("s_mov_b64 exec, -1")
        a("s_memtime s[60:61]")

    def dma_k():
        for n in range(4):
            a("buffer_load_dwordx4 %s, %s, %s offen offset:%d%s lds" % (vr(vKoff + n), sr(srdK, 4), sr(sOffK), n * 1024, polk))

    def dma_v():
        for n in range(4):
            a("buffer_load_dwordx4 %s, %s, %s offen offset:%d%s lds" % (vr(vVoff + (n & 1)), sr(srdV, 4), sr(sOffV), n * 1024, polv_))

    a("s_cmp_ge_u32 s2, 256")
    a("s_cbranch_scc1 L_done")
    a("s_load_dwordx8 s[4:11], s[0:1], 0")
    a("s_load_dwordx4 s[12:15], s[0:1], 32")
    if diag:
        stamp_real(0)
    a("v_lshrrev_b32 v1, 6, v0")
    a("v_and_b32 v0, 63, v0")
    a("v_readfirstlane_b32 %s, v1" % sr(sW))
    a("v_and_b32 v2, 15, v0")
    a("v_lshrrev_b32 v3, 4, v0")
    a("v_xor_b32 v4, v2, v3")
    a("v_lshlrev_b32 v4, 4, v4")
    a("v_lshlrev_b32 v5, 12, v1")
    a("v_lshl_or_b32 v5, v3, 8, v5")
    a("v_or_b32 %s, v5, v4" % vr(vKoff))
    for n in range(1, 4):
        a("v_xor_b32 %s, %d, %s" % (vr(vKoff + n), n << 6, vr(vKoff)))
    a("v_lshlrev_b32 v6, 1, v3")
    a("v_xor_b32 v6, v6, v2")
    a("v_lshl_or_b32 %s, v6, 4, v5" % vr(vVoff))
    a("v_xor_b32 %s, 0x80, %s" % (vr(vVoff + 1), vr(vVoff)))
    a("v_lshlrev_b32 v6, 12, v1")
    a("v_lshl_or_b32 v6, v2, 8, v6")
    a("v_lshl_or_b32 v7, v3, 4, v6")
    if wgmap == 1:
        a("s_and_b32 %s, s2, 63" % sr(sGrp))
        a("s_lshr_b32 %s, s2, 6" % sr(sSpl))
    elif wgmap == 0:
        a("s_lshr_b32 %s, s2, 2" % sr(sGrp))
        a("s_and_b32 %s, s2, 3" % sr(sSpl))
    else:
        a("s_and_b32 %s, s2, 7" % sr(sTmp))
        a("s_lshr_b32 %s, %s, 1" % (sr(sSpl), sr(sTmp)))
        a("s_xor_b32 %s, %s, %s" % (sr(sTmp), sr(sTmp), sr(sSpl)))
        a("s_and_b32 %s, %s, 1" % (sr(sTmp), sr(sTmp)))
        a("s_lshr_b32 %s, s2, 3" % sr(sGrp))
        a("s_lshl_b32 %s, %s, 1" % (sr(sGrp), sr(sGrp)))
        a("s_or_b32 %s, %s, %s" % (sr(sGrp), sr(sGrp), sr(sTmp)))
    a("s_lshl_b32 %s, %s, 21" % (sr(sTmp), sr(sGrp)))
    a("s_lshl_b32 %s, %s, 14" % (sr(sTmp2), sr(sSpl)))
    a("s_add_u32 %s, %s, %s" % (sr(sTmp), sr(sTmp), sr(sTmp2)))
    a("s_sub_u32 %s, 0x200000, %s" % (sr(srdK + 2), sr(sTmp2)))
    a("s_mov_b32 %s, %s" % (sr(srdV + 2), sr(srdK + 2)))
    a("s_mov_b32 %s, 0x20000" % sr(srdK + 3))
    a("s_mov_b32 %s, 0x20000" % sr(srdV + 3))
    a("s_mov_b32 %s, 0x20000" % sr(srdQ + 3))
    a("s_mov_b32 %s, 0x100000" % sr(srdQ + 2))
    a("s_lshl_b32 %s, %s, 14" % (sr(sTmp2), sr(sGrp)))
    a("s_lshl_b32 %s, %s, 12" % (sr(sW4), sr(sW)))
    a("s_mov_b32 %s, %s" % (sr(sM0K), sr(sW4)))
    a("s_add_u32 %s, %s, %d" % (sr(sM0V), sr(sW4), (N - 1) * U))
    a("s_mov_b32 %s, 0" % sr(sOffK))
    a("s_mov_b32 %s, 0x40000000" % sr(sOffV))
    a("s_mov_b32 %s, %d" % (sr(sT), N - 1))
    a("s_mov_b32 %s, 0x%x" % (sr(srdW + 2), (32 << 20) if diag else CTL_OFF + 64 * 256))
    a("s_mov_b32 %s, 0x20000" % sr(srdW + 3))
    a("s_lshl_b32 %s, %s, 8" % (sr(sCtl), sr(sGrp)))
    a("s_add_u32 %s, %s, 0x%x" % (sr(sCtl), sr(sCtl), CTL_OFF))
    a("s_or_b32 %s, %s, %s" % (sr(sInit), sr(sW), sr(sSpl)))
    a("s_waitcnt lgkmcnt(0)")
    if diag:
        stamp_real(1)
    a("s_add_u32 %s, %s, %s" % (sr(srdK), sr(sK), sr(sTmp)))
    a("s_addc_u32 %s, %s, 0" % (sr(srdK + 1), sr(sK + 1)))
    a("s_add_u32 %s, %s, %s" % (sr(srdV), sr(sV), sr(sTmp)))
    a("s_addc_u32 %s, %s, 0" % (sr(srdV + 1), sr(sV + 1)))
    a("s_mov_b32 %s, %s" % (sr(srdQ), sr(sQ)))
    a("s_mov_b32 %s, %s" % (sr(srdQ + 1), sr(sQ + 1)))

    RMASK = N * U - 1

    def refill_v():
        a("s_or_b32 m0, %s, 0x%x" % (sr(sM0V), VBASE))
        a("s_mov_b32 %s, %s" % (sr(sM0V), sr(sM0K)))
        dma_v()

    def refill_k_static():
        a("s_mov_b32 m0, %s" % sr(sM0K))
        a("s_mov_b32 %s, %s" % (sr(sOffV), sr(sOffK)))
        dma_k()
        a("s_add_u32 %s, %s, %d" % (sr(sM0K), sr(sM0K), U))
        a("s_add_u32 %s, %s, %d" % (sr(sOffK), sr(sOffK), tstride))
        a("s_and_b32 %s, %s, 0x%x" % (sr(sM0K), sr(sM0K), RMASK))

    def refill_k_dyn(ds):
        if ds is not None:
            ds.need([("CLAIM",)])
        a("v_readfirstlane_b32 %s, %s" % (sr(sR), vr(vR)))
        a("s_add_u32 %s, %s, 2" % (sr(sJ), sr(sT)))
        a("s_mov_b32 m0, %s" % sr(sM0K))
        a("s_add_u32 %s, %s, %s" % (sr(sR), sr(sR), sr(sDynBase)))
        a("s_lshl_b32 %s, %s, 14" % (sr(sR), sr(sR)))
        a("s_cmp_lt_u32 %s, %d" % (sr(sJ), S))
        a("s_cselect_b32 %s, %s, %s" % (sr(sOffK), sr(sStat), sr(sR)))
        dma_k()
        a("s_add_u32 %s, %s, %d" % (sr(sStat), sr(sStat), tstride))
        a("s_cmp_ge_u32 %s, %s" % (sr(sOffK), sr(srdK + 2)))
        a("s_cselect_b32 %s, %s, %s" % (sr(sJ), sr(sJ), sr(sEnd)))
        a("s_min_u32 %s, %s, %s" % (sr(sEnd), sr(sEnd), sr(sJ)))
        a("s_mov_b32 %s, %s" % (sr(sOffV), sr(sOffK)))
        a("s_add_u32 %s, %s, %d" % (sr(sM0K), sr(sM0K), U))
        a("s_and_b32 %s, %s, 0x%x" % (sr(sM0K), sr(sM0K), RMASK))

    a("s_mov_b32 %s, %s" % (sr(srdW), sr(sWs)))
    a("s_mov_b32 %s, %s" % (sr(srdW + 1), sr(sWs + 1)))
    for j in range(4):
        a("buffer_load_dwordx4 %s, v7, %s, %s offen offset:%d" % (vr(vQ + 4 * j, 4), sr(srdQ, 4), sr(sTmp2), j * 64))
    a("s_cmp_lg_u32 %s, 0" % sr(sInit))
    a("s_cbranch_scc1 L_nohdr")
    a("s_mov_b64 exec, 1")
    a("buffer_load_dword %s, off, %s, %s offset:4 sc1" % (vr(vH), sr(srdW, 4), sr(sCtl)))
    a("s_mov_b64 exec, -1")
    a.label("L_nohdr")

    a.label("L_fill")
    refill_v()
    refill_k_static()
    a("s_sub_u32 %s, %s, 1" % (sr(sT), sr(sT)))
    a("s_cmp_lg_u32 %s, 0" % sr(sT))
    a("s_cbranch_scc1 L_fill")
    if diag:
        stamp_real(2)
    a("v_lshlrev_b32 v6, 8, v2")
    a("v_or_b32 %s, v6, v4" % vr(vKa))
    for j in range(1, 4):
        a("v_xor_b32 %s, %d, %s" % (vr(vKa + j), j << 6, vr(vKa)))
    a("v_lshrrev_b32 v5, 2, v2")
    a("v_lshl_or_b32 v5, v3, 2, v5")
    a("v_and_b32 v6, 7, v5")
    a("v_lshlrev_b32 v6, 5, v6")
    a("v_lshl_or_b32 v6, v5, 8, v6")
    a("v_and_b32 v5, 3, v2")
    a("v_lshl_or_b32 v6, v5, 3, v6")
    for db in range(8):
        a("v_xor_b32 v5, %d, v6" % (db << 5))
        a("v_add_u32 %s, %d, v5" % (vr(vVa + db), VBASE + (N - 1) * U))
    for k in range(32):
        a("v_mov_b32 %s, 0" % vr(vO + k))
    for k in range(8):
        a("v_mov_b32 %s, 0" % vr(vP + k))
    a("v_mov_b32 %s, 0xff800000" % vr(vMC))
    a("v_mov_b32 %s, 0" % vr(vL))
    a("v_mov_b32 %s, 1" % vr(vC))
    a("v_mov_b32 %s, 0x%x" % (vr(vLq), LDSQ))
    a("s_mov_b32 %s, 0x%08x" % (sr(sC), f2u(cscale)))
    a("s_mov_b32 %s, 0x%08x" % (sr(sThr), f2u(thr)))
    a("s_mov_b32 %s, 0" % sr(sT))
    a("s_mov_b32 %s, %d" % (sr(sDNeg), -(N - 1) * U))
    a("s_mov_b32 %s, %d" % (sr(sDPos), U))
    a("s_mov_b32 %s, %d" % (sr(sDV), -(N - 1) * U))
    a("s_mov_b32 %s, %s" % (sr(srdO), sr(sOut)))
    a("s_mov_b32 %s, %s" % (sr(srdO + 1), sr(sOut + 1)))
    a("s_mov_b32 %s, 0x100000" % sr(srdO + 2))
    a("s_mov_b32 %s, 0x20000" % sr(srdO + 3))
    a("s_mov_b32 %s, %s" % (sr(srdD), sr(sDbg)))
    a("s_mov_b32 %s, %s" % (sr(srdD + 1), sr(sDbg + 1)))
    a("s_mov_b32 %s, 256" % sr(srdD + 2))
    a("s_mov_b32 %s, 0x20000" % sr(srdD + 3))
    a("s_lshl_b32 %s, %s, 2" % (sr(sDbgOff), sr(sGrp)))
    a("s_mov_b32 %s, 0" % sr(sEvt))
    a("s_mov_b32 %s, %d" % (sr(sEnd), 32 if not dyn else S + POOL + 1))
    a("s_mov_b32 %s, %s" % (sr(sStat), sr(sOffK)))
    a("s_sub_u32 %s, %d, %s" % (sr(sDynBase), 4 * S, sr(sSpl)))
    a("s_cmp_eq_u32 %s, 0" % sr(sW))
    a("s_cselect_b32 %s, %d, -1" % (sr(sDyn), S - 5))
    if diag:
        a("v_mov_b32 %s, 0" % vr(vDg1))
        a("v_mov_b32 %s, 0" % vr(vDg2))
        a("s_mov_b32 s60, 0")
        stamp_real(3)

    ds = DS(a)
    Sg = lambda k: vr(vS + k)
    X = lambda k: vr(vX + k)
    t = lambda k: vr(vT + k)

    def qk1(kb, j):
        ds.need([("K", kb, j)])
        a("v_mfma_f32_16x16x32_bf16 %s, %s, %s, %s" % (vr(vS + 4 * kb, 4), vr(vK + 16 * kb + 4 * j, 4), vr(vQ + 4 * j, 4),
                                                     "0" if j == 0 else vr(vS + 4 * kb, 4)))

    def vread(db, s):
        b = vV + 8 * db + 4 * s
        ds.issue("ds_read_b64_tr_b16 %s, %s offset:%d" % (vr(b, 2), vr(vVa + db), (2 * s) * 4096), ("V", db, s, 0))
        ds.issue("ds_read_b64_tr_b16 %s, %s offset:%d" % (vr(b + 2, 2), vr(vVa + db), (2 * s + 1) * 4096), ("V", db, s, 1))

    def pv1(db, s):
        ds.need([("V", db, s, 1)])
        a("v_mfma_f32_16x16x32_bf16 %s, %s, %s, %s" % (vr(vO + 4 * db, 4), vr(vV + 8 * db + 4 * s, 4), vr(vP + 4 * s, 4), vr(vO + 4 * db, 4)))

    def sm_fma(k):
        a("v_fma_f32 %s, %s, %s, -%s" % (X(k), Sg(k), sr(sC), vr(vMC)))

    def sm_exp(k):
        a("v_exp_f32 %s, %s" % (X(k), X(k)))

    def cvt(k):
        a("v_cvt_pk_bf16_f32 %s, %s, %s" % (vr(vP + k), X(2 * k), X(2 * k + 1)))

    a.label("L_loop")
    a("s_waitcnt vmcnt(%d)" % VM)
    if dyn:
        a("s_cmp_ge_u32 %s, %s" % (sr(sT), sr(sDyn)))
        a("s_cbranch_scc0 L_nb")
        a("s_sub_u32 %s, %s, %d" % (sr(sTmp), sr(sT), S - 3))
        a("s_lshl_b64 exec, 1, %s" % sr(sTmp))
        a("ds_write_b32 %s, %s" % (vr(vLq), vr(vC)))
        a("s_mov_b64 exec, -1")
        a("s_waitcnt lgkmcnt(0)")
        a.label("L_nb")
    a("s_barrier")
    if dyn:
        ds.issue("ds_read_b32 %s, %s" % (vr(vR), vr(vLq)), ("CLAIM",))
    a("s_cmp_eq_u32 %s, %s" % (sr(sT), sr(sEvt)))
    a("s_cbranch_scc1 L_svc")
    a.label("L_svcret")
    if dyn:
        a("s_cmp_ge_u32 %s, %s" % (sr(sT), sr(sDyn)))
        a("s_cbranch_scc0 L_na")
        a("s_sub_u32 %s, %s, %d" % (sr(sTmp), sr(sT), S - 5))
        a("s_lshl_b64 exec, 1, %s" % sr(sTmp))
        a("buffer_atomic_add %s, off, %s, %s sc0" % (vr(vC), sr(srdW, 4), sr(sCtl)))
        a("s_mov_b64 exec, -1")
        a.label("L_na")
    if diag:
        stamp_tile()
        a("s_cmp_lg_u32 %s, 0" % sr(sT))
        a("s_cbranch_scc1 L_nost")
        stamp_real(4)
        a.label("L_nost")
    a("s_add_u32 %s, %s, 1" % (sr(sT), sr(sT)))
    refill_k = (lambda: refill_k_dyn(ds)) if dyn else refill_k_static
    if nocompute:
        refill_v()
        refill_k()
        if dyn:
            a("v_xor_b32 %s, 4, %s" % (vr(vLq), vr(vLq)))
        ds.done = len(ds.q)
        ds.reset()
    else:
        units = [("K", 0, j) for j in range(4)] + [("K", 1, j) for j in range(4)] + [("V", db, 0) for db in range(8)] + \
                [("K", 2, j) for j in range(4)] + [("K", 3, j) for j in range(4)] + [("V", db, 1) for db in range(8)]

        def issue(u):
            if u >= 32:
                return
            kind, x, y = units[u]
            if kind == "K":
                ds.issue("ds_read_b128 %s, %s offset:%d" % (vr(vK + 16 * x + 4 * y, 4), vr(vKa + y), x * 4096), ("K", x, y))
            else:
                vread(x, y)

        def tag(u):
            kind, x, y = units[u]
            return ("K", x, y) if kind == "K" else ("V", x, y, 1)

        def mfma(u):
            kind, x, y = units[u]
            if u % 2 == 0:
                ds.need([tag(u + 1)])
            if kind == "K":
                qk1(x, y)
            else:
                pv1(x, y)

        def padd(d, x, y):
            a("v_add_f32 %s, %s, %s" % (d, x, y))

        D = DIST
        for u in range(D):
            issue(u)
        refill_v()
        a("s_and_b32 %s, %s, %d" % (sr(sTmp), sr(sT), N - 1))
        a("s_cselect_b32 %s, %s, %s" % (sr(sDK), sr(sDPos), sr(sDNeg)))
        fill = {i: [] for i in range(33)}
        F = lambda i, fn, *args: fill[i].append((fn, args))
        for h, base in ((0, 8), (1, 24)):
            k0 = 8 * h
            for m in range(8):
                F(base + m, sm_fma, k0 + m)
                F(base + m + 1, sm_exp, k0 + m)
        F(17, padd, t(0), X(0), X(1)); F(17, padd, t(1), X(2), X(3))
        F(18, padd, t(2), X(4), X(5)); F(18, padd, t(3), X(6), X(7))
        F(19, cvt, 0); F(19, cvt, 1)
        F(20, cvt, 2); F(20, cvt, 3)
        F(21, padd, t(0), t(0), t(1)); F(21, padd, t(2), t(2), t(3))
        F(22, padd, t(0), t(0), t(2))
        def kadd(j):
            a("v_add_u32 %s, %s, %s" % (vr(vKa + j), sr(sDK), vr(vKa + j)))
        def vadd(db):
            a("v_add_u32 %s, %s, %s" % (vr(vVa + db), sr(sDV), vr(vVa + db)))
        lastK = max(u for u in range(32) if units[u][0] == "K") - D
        for j in range(4):
            F(lastK + 1 + j // 2, kadd, j)
        for db in range(8):
            F(24 - D + db + 1 if 24 - D + db + 1 <= 32 else 32, vadd, db)
        F(kslot, refill_k)
        if dyn:
            F(kslot + 1, lambda: a("v_xor_b32 %s, 4, %s" % (vr(vLq), vr(vLq))))
        for u in range(32):
            mfma(u)
            issue(u + D)
            for fn, args in fill[u]:
                fn(*args)
        for fn, args in fill[32]:
            fn(*args)
        padd(t(1), X(8), X(9))
        padd(t(2), X(10), X(11))
        padd(t(3), X(12), X(13))
        cvt(4); cvt(5)
        padd(t(4), X(14), X(15))
        padd(t(0), t(0), t(1))
        padd(t(2), t(2), t(3))
        cvt(6)
        padd(t(0), t(0), t(4))
        cvt(7)
        padd(t(0), t(0), t(2))
        a("v_cmp_nge_f32 vcc, %s, %s" % (sr(sThr), t(0)))
        a("s_mov_b32 %s, %s" % (sr(sDV), sr(sDK)))
        a("s_cbranch_vccnz L_slow")
        a.label("L_back")
        a("v_add_f32 %s, %s, %s" % (vr(vL), vr(vL), t(0)))
        ds.reset()
    a("s_cmp_lt_u32 %s, %s" % (sr(sT), sr(sEnd)))
    a("s_cbranch_scc1 L_loop")

    RS = vK
    R = vV
    vTagV = 7
    sPubA, sPubB, sSel, sFF = 44, 45, 50, 51
    sInD, sInM = [46, 47, 92], [93, 94, 95]
    a("v_mov_b32 %s, %s" % (t(1), vr(vL)))
    a("v_mov_b32 %s, %s" % (vr(vTagV), sr(sTag)))
    a("v_permlane32_swap_b32 %s, %s" % (t(1), vr(vL)))
    a("s_lshl_b32 %s, %s, 2" % (sr(sTmp), sr(sGrp)))
    a("s_add_u32 %s, %s, %s" % (sr(sTmp2), sr(sTmp), sr(sW)))
    a("v_add_f32 %s, %s, %s" % (vr(vL), vr(vL), t(1)))
    a("s_lshl_b32 %s, %s, 2" % (sr(sTmp2), sr(sTmp2)))
    a("v_mov_b32 %s, %s" % (t(1), vr(vL)))
    a("s_add_u32 %s, %s, %s" % (sr(sTmp2), sr(sTmp2), sr(sSpl)))
    a("s_mul_i32 %s, %s, %d" % (sr(sPubA), sr(sTmp2), WSLOT))
    a("v_permlane16_swap_b32 %s, %s" % (t(1), vr(vL)))
    a("s_add_u32 %s, %s, 4096" % (sr(sPubB), sr(sPubA)))
    a("s_add_u32 %s, %s, %s" % (sr(sTmp2), sr(sTmp), sr(sSpl)))
    a("v_add_f32 %s, %s, %s" % (t(1), vr(vL), t(1)))
    a("v_mov_b32 %s, %s" % (t(0), vr(vMC)))
    a("v_mov_b32 %s, %s" % (t(2), sr(sTag)))
    a("v_mov_b32 %s, %s" % (t(3), sr(sTag)))
    a("s_mul_i32 %s, %s, %d" % (sr(sTmp2), sr(sTmp2), 4 * WSLOT))
    a("s_lshl_b32 %s, %s, 11" % (sr(sTmp), sr(sW)))
    for k in range(1, 4):
        a("s_add_u32 %s, %s, %d" % (sr(sR), sr(sSpl), k))
        a("s_and_b32 %s, %s, 3" % (sr(sR), sr(sR)))
        a("s_mul_i32 %s, %s, %d" % (sr(sR), sr(sR), WSLOT))
        a("s_add_u32 %s, %s, %s" % (sr(sInM[k - 1]), sr(sTmp2), sr(sR)))
        a("s_add_u32 %s, %s, %s" % (sr(sInD[k - 1]), sr(sInM[k - 1]), sr(sTmp)))
    a("v_lshlrev_b32 v2, 4, v0")
    a("v_and_b32 v5, 15, v0")
    a("v_lshlrev_b32 v3, 4, v5")
    a("v_add_u32 v3, 8192, v3")
    a("v_add_u32 v4, 0x%x, v2" % SELF)
    a("v_lshlrev_b32 v6, 3, v5")
    a("v_add_u32 v6, 0x%x, v6" % (SELF + 8192))
    a("s_mov_b32 %s, 0x07060500" % sr(sSel))
    a("s_mov_b32 %s, 0xff" % sr(sFF))
    a("s_waitcnt vmcnt(%d)" % (VM + 4))
    a("s_barrier")
    if not nocompute:
        for db in range(3):
            vread(db, 0); vread(db, 1)
        for db in range(8):
            pv1(db, 0); pv1(db, 1)
            if db + 3 < 8:
                vread(db + 3, 0); vread(db + 3, 1)
        ds.reset()

    if diag:
        stamp_real(5)
        a("s_add_u32 s62, %s, 63" % sr(sT))
        a("s_lshl_b64 exec, 1, s62")
        a("v_mov_b32 %s, s60" % vr(vDg1))
        a("s_mov_b64 exec, -1")
    a("s_cmp_eq_u32 %s, %s" % (sr(sW), sr(sSpl)))
    a("s_cbranch_scc1 L_self")
    for n in range(8):
        for k in range(4):
            a("v_perm_b32 %s, %s, %s, %s" % (vr(vO + 4 * n + k), vr(vO + 4 * n + k), vr(vTagV), sr(sSel)))
        a("buffer_store_dwordx4 %s, v2, %s, %s offen offset:%d sc1" % (vr(vO + 4 * n, 4), sr(srdW, 4), sr(sPubA if n < 4 else sPubB), (n & 3) * 1024))
    a("s_mov_b64 exec, 0xffff")
    a("buffer_store_dwordx4 %s, v3, %s, %s offen sc1" % (vr(vT, 4), sr(srdW, 4), sr(sPubA)))
    a("s_mov_b64 exec, -1")
    a("s_branch L_pubd")
    a.label("L_self")
    a("s_nop 7")
    for n in range(8):
        a("ds_write_b128 v4, %s offset:%d" % (vr(vO + 4 * n, 4), n * 1024))
    a("s_mov_b64 exec, 0xffff")
    a("ds_write_b64 v6, %s" % vr(vT, 2))
    a("s_mov_b64 exec, -1")
    a("s_waitcnt lgkmcnt(0)")
    a.label("L_pubd")
    if diag:
        stamp_real(6)
    sMask, sCnt = 48, 49
    a("s_mov_b32 %s, 14" % sr(sMask))
    a("s_mov_b32 %s, 0" % sr(sCnt))
    a("s_lshl_b32 %s, %s, 11" % (sr(sTmp), sr(sW)))
    a("v_add_u32 v4, %s, v4" % sr(sTmp))
    a.label("L_poll")
    for k in range(1, 4):
        a("s_bitcmp1_b32 %s, %d" % (sr(sMask), k))
        a("s_cbranch_scc0 L_pl%d" % k)
        rb = R + 12 * (k - 1)
        for e in range(2):
            a("buffer_load_dwordx4 %s, v2, %s, %s offen offset:%d sc1" % (vr(rb + 4 * e, 4), sr(srdW, 4), sr(sInD[k - 1]), e * 1024))
        a("buffer_load_dwordx4 %s, v3, %s, %s offen sc1" % (vr(rb + 8, 4), sr(srdW, 4), sr(sInM[k - 1])))
        a.label("L_pl%d" % k)
    a("s_cmp_lg_u32 %s, 0" % sr(sCnt))
    a("s_cbranch_scc1 L_pw")
    a("s_barrier")
    a("ds_read_b128 %s, v4" % vr(RS, 4))
    a("ds_read_b128 %s, v4 offset:1024" % vr(RS + 4, 4))
    a("ds_read_b64 %s, v6" % vr(RS + 8, 2))
    a("v_and_b32 v5, 15, v0")
    a("v_lshrrev_b32 v6, 4, v0")
    a("v_lshlrev_b32 v5, 8, v5")
    a("v_lshl_or_b32 v5, v6, 3, v5")
    a("s_lshl_b32 %s, %s, 6" % (sr(sTmp), sr(sW)))
    a("v_add_u32 v5, %s, v5" % sr(sTmp))
    a("s_lshl_b32 %s, %s, 14" % (sr(sTmp), sr(sGrp)))
    a("s_lshl_b32 %s, %s, 12" % (sr(sTmp2), sr(sSpl)))
    a("s_add_u32 %s, %s, %s" % (sr(sTmp), sr(sTmp), sr(sTmp2)))
    a.label("L_pw")
    a("s_add_u32 %s, %s, 1" % (sr(sCnt), sr(sCnt)))
    a("s_waitcnt vmcnt(0)")
    for k in range(1, 4):
        rb = R + 12 * (k - 1)
        for j in range(8):
            a("v_xor_b32 %s, %s, %s" % (vr(vX + j), vr(vTagV), vr(rb + j)))
        a("v_xor_b32 %s, %s, %s" % (vr(vX + 8), vr(vTagV), vr(rb + 10)))
        a("v_or3_b32 %s, %s, %s, %s" % (vr(vX), vr(vX), vr(vX + 1), vr(vX + 2)))
        a("v_or3_b32 %s, %s, %s, %s" % (vr(vX + 3), vr(vX + 3), vr(vX + 4), vr(vX + 5)))
        a("v_or3_b32 %s, %s, %s, %s" % (vr(vX), vr(vX), vr(vX + 6), vr(vX + 7)))
        a("v_or_b32 %s, %s, %s" % (vr(vX), vr(vX), vr(vX + 3)))
        a("v_and_or_b32 %s, %s, %s, %s" % (vr(vX), vr(vX), sr(sFF), vr(vX + 8)))
        a("v_cmp_ne_u32 vcc, 0, %s" % vr(vX))
        a("s_cbranch_vccnz L_pm%d" % k)
        a("s_bitset0_b32 %s, %d" % (sr(sMask), k))
        a.label("L_pm%d" % k)
    a("s_cmp_ge_u32 %s, 0x8000" % sr(sCnt))
    a("s_cbranch_scc1 L_polled")
    a("s_cmp_lg_u32 %s, 0" % sr(sMask))
    a("s_cbranch_scc1 L_poll")
    a.label("L_polled")
    if diag:
        stamp_real(7)
    a("s_waitcnt lgkmcnt(0)")
    mm = lambda k: vr(RS + 8) if k == 0 else vr(R + 12 * (k - 1) + 8)
    ll = lambda k: vr(RS + 9) if k == 0 else vr(R + 12 * (k - 1) + 9)
    dd = lambda k, j: vr(RS + j) if k == 0 else vr(R + 12 * (k - 1) + j)
    a("v_max3_f32 %s, %s, %s, %s" % (t(0), mm(0), mm(1), mm(2)))
    a("v_max_f32 %s, %s, %s" % (t(0), t(0), mm(3)))
    for k in range(4):
        a("v_sub_f32 %s, %s, %s" % (mm(k), mm(k), t(0)))
    for k in range(4):
        a("v_exp_f32 %s, %s" % (mm(k), mm(k)))
    a("v_mul_f32 %s, %s, %s" % (t(1), mm(0), ll(0)))
    for k in range(1, 4):
        a("v_fma_f32 %s, %s, %s, %s" % (t(1), mm(k), ll(k), t(1)))
    a("v_rcp_f32 %s, %s" % (t(1), t(1)))
    for j in range(8):
        a("v_mul_f32 %s, %s, %s" % (vr(vS + j), mm(0), dd(0, j)))
    for k in range(1, 4):
        for j in range(8):
            a("v_fma_f32 %s, %s, %s, %s" % (vr(vS + j), mm(k), dd(k, j), vr(vS + j)))
    for j in range(8):
        a("v_mul_f32 %s, %s, %s" % (vr(vS + j), t(1), vr(vS + j)))
    for k in range(4):
        a("v_cvt_pk_bf16_f32 %s, %s, %s" % (vr(vP + k), vr(vS + 2 * k), vr(vS + 2 * k + 1)))
    for e in range(2):
        a("buffer_store_dwordx2 %s, v5, %s, %s offen offset:%d%s" % (vr(vP + 2 * e, 2), sr(srdO, 4), sr(sTmp), e * 32, (" " + opol) if opol else ""))
    if diag:
        stamp_real(8)
        a("s_waitcnt lgkmcnt(0)")
        for idx in range(9):
            a("s_lshl_b64 exec, 1, %d" % idx)
            a("v_mov_b32 %s, s%d" % (vr(vDg2), 64 + 2 * idx))
        a("s_lshl_b64 exec, 1, 12")
        a("v_mov_b32 %s, %s" % (vr(vDg2), sr(sT)))
        a("s_lshl_b64 exec, 1, 13")
        a("v_mov_b32 %s, %s" % (vr(vDg2), sr(sCnt)))
        a("s_getreg_b32 s60, hwreg(HW_REG_XCC_ID)")
        a("s_lshl_b64 exec, 1, 14")
        a("v_mov_b32 %s, s60" % vr(vDg2))
        a("s_getreg_b32 s60, hwreg(HW_REG_HW_ID)")
        a("s_lshl_b64 exec, 1, 15")
        a("v_mov_b32 %s, s60" % vr(vDg2))
        a("s_mov_b64 exec, -1")
        a("s_lshl_b32 s60, s2, 2")
        a("s_add_u32 s60, s60, %s" % sr(sW))
        a("s_lshl_b32 s60, s60, 9")
        a("s_add_u32 s60, s60, 0x1000000")
        a("v_lshlrev_b32 v1, 2, v0")
        a("buffer_store_dword %s, v1, %s, s60 offen" % (vr(vDg1), sr(srdW, 4)))
        a("buffer_store_dword %s, v1, %s, s60 offen offset:256" % (vr(vDg2), sr(srdW, 4)))
    a.label("L_done")
    a("s_endpgm")

    a.label("L_svc")
    a("s_cmp_eq_u32 %s, 0" % sr(sT))
    a("s_cbranch_scc1 L_svcB")
    a("s_cmp_eq_u32 %s, 3" % sr(sT))
    a("s_cbranch_scc1 L_svcC")
    a("s_cmp_eq_u32 %s, %d" % (sr(sT), D0))
    a("s_cbranch_scc1 L_svcD")
    a("s_mov_b32 %s, -1" % sr(sEvt))
    a("v_readfirstlane_b32 %s, %s" % (sr(sTag), vr(vH)))
    a("s_mov_b32 %s, 0" % sr(sTmp))
    a("s_cmp_lg_u32 %s, 0" % sr(sTag))
    a("s_cbranch_scc1 L_svcret")
    a.label("L_spin")
    a("buffer_load_dword %s, off, %s, %s sc1" % (vr(vH), sr(srdD, 4), sr(sDbgOff)))
    a("s_add_u32 %s, %s, 1" % (sr(sTmp), sr(sTmp)))
    a("s_waitcnt vmcnt(0)")
    a("v_readfirstlane_b32 %s, %s" % (sr(sTag), vr(vH)))
    a("s_cmp_ge_u32 %s, 0x8000" % sr(sTmp))
    a("s_cbranch_scc1 L_svcret")
    a("s_cmp_eq_u32 %s, 0" % sr(sTag))
    a("s_cbranch_scc1 L_spin")
    a("s_branch L_svcret")
    a.label("L_svcB")
    a("s_mov_b32 %s, 3" % sr(sEvt))
    a("s_cmp_lg_u32 %s, 0" % sr(sInit))
    a("s_cbranch_scc1 L_svcret")
    a("v_readfirstlane_b32 %s, %s" % (sr(sTag), vr(vH)))
    a("v_mov_b32 %s, 0" % vr(vPair))
    a("s_add_u32 %s, %s, 1" % (sr(sTag), sr(sTag)))
    a("s_addc_u32 %s, %s, 0" % (sr(sTag), sr(sTag)))
    a("v_mov_b32 %s, %s" % (vr(vPair + 1), sr(sTag)))
    a("s_mov_b64 exec, 1")
    a("buffer_store_dwordx2 %s, off, %s, %s sc1" % (vr(vPair, 2), sr(srdW, 4), sr(sCtl)))
    a("s_mov_b64 exec, -1")
    a("s_branch L_svcret")
    a.label("L_svcC")
    a("s_mov_b32 %s, %d" % (sr(sEvt), D0))
    a("s_cmp_lg_u32 %s, 0" % sr(sInit))
    a("s_cbranch_scc1 L_svcret")
    a("s_mov_b64 exec, 1")
    a("buffer_store_dword %s, off, %s, %s sc1" % (vr(vPair + 1), sr(srdD, 4), sr(sDbgOff)))
    a("s_mov_b64 exec, -1")
    a("s_branch L_svcret")
    a.label("L_svcD")
    a("s_mov_b32 %s, %d" % (sr(sEvt), D0 + 3))
    a("s_mov_b64 exec, 1")
    a("buffer_load_dword %s, off, %s, %s sc1" % (vr(vH), sr(srdD, 4), sr(sDbgOff)))
    a("s_mov_b64 exec, -1")
    a("s_branch L_svcret")

    if not nocompute:
        a.label("L_slow")
        a("s_nop 7")
        a("v_max3_f32 %s, %s, %s, %s" % (t(0), Sg(0), Sg(1), Sg(2)))
        a("v_max3_f32 %s, %s, %s, %s" % (t(1), Sg(3), Sg(4), Sg(5)))
        a("v_max3_f32 %s, %s, %s, %s" % (t(2), Sg(6), Sg(7), Sg(8)))
        a("v_max3_f32 %s, %s, %s, %s" % (t(0), t(0), Sg(9), Sg(10)))
        a("v_max3_f32 %s, %s, %s, %s" % (t(1), t(1), Sg(11), Sg(12)))
        a("v_max3_f32 %s, %s, %s, %s" % (t(2), t(2), Sg(13), Sg(14)))
        a("v_max3_f32 %s, %s, %s, %s" % (t(0), t(0), t(1), Sg(15)))
        a("v_max_f32 %s, %s, %s" % (t(0), t(0), t(2)))
        a("v_mov_b32 %s, %s" % (t(1), t(0)))
        a("v_permlane32_swap_b32 %s, %s" % (t(1), t(0)))
        a("v_max_f32 %s, %s, %s" % (t(0), t(0), t(1)))
        a("v_mov_b32 %s, %s" % (t(1), t(0)))
        a("v_permlane16_swap_b32 %s, %s" % (t(1), t(0)))
        a("v_max_f32 %s, %s, %s" % (t(0), t(0), t(1)))
        a("v_mul_f32 %s, %s, %s" % (t(0), sr(sC), t(0)))
        a("v_max_f32 %s, %s, %s" % (t(0), t(0), vr(vMC)))
        a("v_sub_f32 %s, %s, %s" % (t(1), vr(vMC), t(0)))
        a("v_mov_b32 %s, %s" % (vr(vMC), t(0)))
        a("v_exp_f32 %s, %s" % (vr(vAl), t(1)))
        for k in range(16):
            sm_fma(k)
        for k in range(16):
            sm_exp(k)
        a("v_mul_f32 %s, %s, %s" % (vr(vL), vr(vAl), vr(vL)))
        for k in range(32):
            a("v_mul_f32 %s, %s, %s" % (vr(vO + k), vr(vAl), vr(vO + k)))
        a("v_add_f32 %s, %s, %s" % (t(0), X(0), X(1)))
        for k in range(2, 16):
            a("v_add_f32 %s, %s, %s" % (t(0), t(0), X(k)))
        for k in range(8):
            cvt(k)
        a("s_branch L_back")

    loops = [("L_loop", "s_cbranch_scc1 L_loop"), ("L_poll", "s_cbranch_scc1 L_poll"), ("L_fill", "s_cbranch_scc1 L_fill"),
             ("L_spin", "s_cbranch_scc1 L_spin")]
    body, nadd = pad_hazards(a.lines, loops=loops)
    out = []
    out.append("; params: N=%d pol=%r wgmap=%d dyn=%d S=%d diag=%d nocompute=%d" % (N, pol, wgmap, dyn, S, diag, nocompute))
    out.append("; @launch grid=(256,1,1) block=(256,1,1) lds=%d" % LDS)
    out.append('.amdgcn_target "amdgcn-amd-amdhsa--gfx950"')
    out.append(".text")
    out.append(".globl %s_kernel" % NAME)
    out.append(".p2align 8")
    out.append(".type %s_kernel,@function" % NAME)
    out.append("%s_kernel:" % NAME)
    for ln in body:
        out.append(ln if ln.endswith(":") else "    " + ln)
    out.append('.section .rodata,"a"')
    out.append(".p2align 6")
    out.append(".amdhsa_kernel %s_kernel" % NAME)
    out.append("  .amdhsa_next_free_vgpr 256")
    out.append("  .amdhsa_next_free_sgpr 96")
    out.append("  .amdhsa_accum_offset 256")
    out.append("  .amdhsa_group_segment_fixed_size 0")
    out.append("  .amdhsa_kernarg_size 48")
    out.append("  .amdhsa_user_sgpr_count 2")
    out.append("  .amdhsa_user_sgpr_kernarg_segment_ptr 1")
    out.append("  .amdhsa_system_sgpr_workgroup_id_x 1")
    out.append(".end_amdhsa_kernel")
    return "\n".join(out) + "\n", nadd


if __name__ == "__main__":
    ap = argparse.ArgumentParser()
    ap.add_argument("-o", default="cdna_kernels/%s.s" % NAME)
    ap.add_argument("--pol", default="nt")
    ap.add_argument("--wgmap", type=int, default=2)
    ap.add_argument("--diag", type=int, default=0)
    ap.add_argument("--nocompute", type=int, default=0)
    ap.add_argument("--polv", default=None)
    ap.add_argument("--dist", type=int, default=7)
    ap.add_argument("--dyn", type=int, default=1)
    ap.add_argument("--S", type=int, default=20)
    ap.add_argument("--kslot", type=int, default=2)
    ap.add_argument("--pollall", type=int, default=0)
    ap.add_argument("--xg", type=int, default=3)
    ap.add_argument("--opol", default="")
    args = ap.parse_args()
    txt, nadd = gen(pol=args.pol, wgmap=args.wgmap, diag=args.diag, nocompute=args.nocompute, DIST=args.dist, polv=args.polv,
                    dyn=args.dyn, S=args.S, kslot=args.kslot, pollall=args.pollall, xg=args.xg, opol=args.opol)
    open(args.o, "w").write(txt)
    print("wrote", args.o, "nops inserted:", nadd, "lines:", txt.count("\n"))
```

```python
import argparse, math, struct
from asmlib import Asm, pad_hazards

NAME = "standalone__gqa_softmax__sampling"


def vr(b, n=1):
    return "v%d" % b if n == 1 else "v[%d:%d]" % (b, b + n - 1)


def sr(b, n=1):
    return "s%d" % b if n == 1 else "s[%d:%d]" % (b, b + n - 1)


class DS:
    def __init__(self, a):
        self.a = a
        self.q = []
        self.done = 0

    def issue(self, text, tag):
        self.a(text)
        self.q.append(tag)

    def need(self, tags):
        idx = max(i for i, t in enumerate(self.q) if t in tags)
        if idx < self.done:
            return
        n = min(len(self.q) - 1 - idx, 14)
        self.a("s_waitcnt lgkmcnt(%d)" % n)
        self.done = len(self.q) - n

    def reset(self):
        assert self.done == len(self.q), (self.done, len(self.q))
        self.q = []
        self.done = 0


def gen(N=4, pol="nt", wgmap=2, diag=0, nocompute=0, thr=256.0, DIST=7, polv=None, dyn=1, S=20, kslot=2, pollall=0, xg=3, opol='', PD=3):
    a = Asm()
    assert N == 4
    if not dyn:
        S = 32
    POOL = 128 - 4 * S
    D0 = 11 if not dyn else min(11, S - 9)
    assert D0 >= 5
    U = 16384
    KBASE, VBASE = 0, N * U
    LDSQ = 2 * N * U
    SELF = 2 * N * U + 64
    LDS = SELF + 8192 + 128
    VM = 8 * (PD - 1)
    L = PD - 1
    sQ, sK, sV, sOut, sDbg, sWs = 4, 6, 8, 10, 12, 14
    srdK, srdV, srdQ, srdW, srdO, srdD = 16, 20, 24, 28, 32, 36
    sW, sGrp, sSpl, sT = 40, 41, 42, 43
    sOffK, sOffV, sM0K, sM0V = 44, 45, 46, 47
    sDK, sDV, sC, sTmp, sTmp2, sThr = 48, 49, 50, 52, 53, 54
    sW4 = 58
    sDNeg, sDPos = 59, 63
    sEvt, sTag, sEnd, sDyn, sR, sInit, sStat, sDynBase, sCtl, sDbgOff, sJ = 82, 83, 84, 85, 86, 87, 88, 89, 90, 91, 92
    vC, vLq, vR, vH, vPair = 1, 3, 4, 27, 6
    vKoff, vVoff, vKa, vVa = 8, 12, 14, 18
    vMC, vL, vAl = 26, 28, 29
    vT = 30
    vDg1, vDg2 = 38, 39
    vQ, vS, vP, vO, vK, vV, vX = 40, 56, 72, 80, 112, 176, 240
    WSLOT = 8448
    CTL_OFF = 12 << 20
    cscale = (128 ** -0.5) * math.log2(math.e)
    f2u = lambda x: struct.unpack("<I", struct.pack("<f", x))[0]
    tstride = 65536
    polk = (" " + pol) if pol else ""
    polv_ = polk if polv is None else ((" " + polv) if polv else "")

    def stamp_real(idx):
        a("s_memrealtime s[%d:%d]" % (64 + 2 * idx, 65 + 2 * idx))

    def stamp_tile():
        a("s_add_u32 s62, %s, 63" % sr(sT))
        a("s_lshl_b64 exec, 1, s62")
        a("v_mov_b32 %s, s60" % vr(vDg1))
        a("s_mov_b64 exec, -1")
        a("s_memtime s[60:61]")

    def dma_k():
        for n in range(4):
            a("buffer_load_dwordx4 %s, %s, %s offen offset:%d%s lds" % (vr(vKoff + n), sr(srdK, 4), sr(sOffK), n * 1024, polk))

    def dma_v():
        for n in range(4):
            a("buffer_load_dwordx4 %s, %s, %s offen offset:%d%s lds" % (vr(vVoff + (n & 1)), sr(srdV, 4), sr(sOffV), n * 1024, polv_))

    a("s_cmp_ge_u32 s2, 256")
    a("s_cbranch_scc1 L_done")
    a("s_load_dwordx8 s[4:11], s[0:1], 0")
    a("s_load_dwordx4 s[12:15], s[0:1], 32")
    if diag:
        stamp_real(0)
    a("v_lshrrev_b32 v1, 6, v0")
    a("v_and_b32 v0, 63, v0")
    a("v_readfirstlane_b32 %s, v1" % sr(sW))
    a("v_and_b32 v2, 15, v0")
    a("v_lshrrev_b32 v3, 4, v0")
    a("v_xor_b32 v4, v2, v3")
    a("v_lshlrev_b32 v4, 4, v4")
    a("v_lshlrev_b32 v5, 12, v1")
    a("v_lshl_or_b32 v5, v3, 8, v5")
    a("v_or_b32 %s, v5, v4" % vr(vKoff))
    for n in range(1, 4):
        a("v_xor_b32 %s, %d, %s" % (vr(vKoff + n), n << 6, vr(vKoff)))
    a("v_lshlrev_b32 v6, 1, v3")
    a("v_xor_b32 v6, v6, v2")
    a("v_lshl_or_b32 %s, v6, 4, v5" % vr(vVoff))
    a("v_xor_b32 %s, 0x80, %s" % (vr(vVoff + 1), vr(vVoff)))
    a("v_lshlrev_b32 v6, 12, v1")
    a("v_lshl_or_b32 v6, v2, 8, v6")
    a("v_lshl_or_b32 v7, v3, 4, v6")
    if wgmap == 1:
        a("s_and_b32 %s, s2, 63" % sr(sGrp))
        a("s_lshr_b32 %s, s2, 6" % sr(sSpl))
    elif wgmap == 0:
        a("s_lshr_b32 %s, s2, 2" % sr(sGrp))
        a("s_and_b32 %s, s2, 3" % sr(sSpl))
    else:
        a("s_and_b32 %s, s2, 7" % sr(sTmp))
        a("s_lshr_b32 %s, %s, 1" % (sr(sSpl), sr(sTmp)))
        a("s_xor_b32 %s, %s, %s" % (sr(sTmp), sr(sTmp), sr(sSpl)))
        a("s_and_b32 %s, %s, 1" % (sr(sTmp), sr(sTmp)))
        a("s_lshr_b32 %s, s2, 3" % sr(sGrp))
        a("s_lshl_b32 %s, %s, 1" % (sr(sGrp), sr(sGrp)))
        a("s_or_b32 %s, %s, %s" % (sr(sGrp), sr(sGrp), sr(sTmp)))
    a("s_lshl_b32 %s, %s, 21" % (sr(sTmp), sr(sGrp)))
    a("s_lshl_b32 %s, %s, 14" % (sr(sTmp2), sr(sSpl)))
    a("s_add_u32 %s, %s, %s" % (sr(sTmp), sr(sTmp), sr(sTmp2)))
    a("s_sub_u32 %s, 0x200000, %s" % (sr(srdK + 2), sr(sTmp2)))
    a("s_mov_b32 %s, %s" % (sr(srdV + 2), sr(srdK + 2)))
    a("s_mov_b32 %s, 0x20000" % sr(srdK + 3))
    a("s_mov_b32 %s, 0x20000" % sr(srdV + 3))
    a("s_mov_b32 %s, 0x20000" % sr(srdQ + 3))
    a("s_mov_b32 %s, 0x100000" % sr(srdQ + 2))
    a("s_lshl_b32 %s, %s, 14" % (sr(sTmp2), sr(sGrp)))
    a("s_lshl_b32 %s, %s, 12" % (sr(sW4), sr(sW)))
    a("s_mov_b32 %s, %s" % (sr(sM0K), sr(sW4)))
    a("s_add_u32 %s, %s, %d" % (sr(sM0V), sr(sW4), (N - 1) * U))
    a("s_mov_b32 %s, 0" % sr(sOffK))
    a("s_mov_b32 %s, 0x40000000" % sr(sOffV))
    a("s_mov_b32 %s, %d" % (sr(sT), PD))
    a("s_mov_b32 %s, 0x%x" % (sr(srdW + 2), (32 << 20) if diag else CTL_OFF + 64 * 256))
    a("s_mov_b32 %s, 0x20000" % sr(srdW + 3))
    a("s_lshl_b32 %s, %s, 8" % (sr(sCtl), sr(sGrp)))
    a("s_add_u32 %s, %s, 0x%x" % (sr(sCtl), sr(sCtl), CTL_OFF))
    a("s_or_b32 %s, %s, %s" % (sr(sInit), sr(sW), sr(sSpl)))
    a("s_waitcnt lgkmcnt(0)")
    if diag:
        stamp_real(1)
    a("s_add_u32 %s, %s, %s" % (sr(srdK), sr(sK), sr(sTmp)))
    a("s_addc_u32 %s, %s, 0" % (sr(srdK + 1), sr(sK + 1)))
    a("s_add_u32 %s, %s, %s" % (sr(srdV), sr(sV), sr(sTmp)))
    a("s_addc_u32 %s, %s, 0" % (sr(srdV + 1), sr(sV + 1)))
    a("s_mov_b32 %s, %s" % (sr(srdQ), sr(sQ)))
    a("s_mov_b32 %s, %s" % (sr(srdQ + 1), sr(sQ + 1)))

    RMASK = N * U - 1

    def refill_v():
        a("s_or_b32 m0, %s, 0x%x" % (sr(sM0V), VBASE))
        a("s_mov_b32 %s, %s" % (sr(sM0V), sr(sM0K)))
        dma_v()

    def refill_k_static():
        a("s_mov_b32 m0, %s" % sr(sM0K))
        a("s_mov_b32 %s, %s" % (sr(sOffV), sr(sOffK)))
        dma_k()
        a("s_add_u32 %s, %s, %d" % (sr(sM0K), sr(sM0K), U))
        a("s_add_u32 %s, %s, %d" % (sr(sOffK), sr(sOffK), tstride))
        a("s_and_b32 %s, %s, 0x%x" % (sr(sM0K), sr(sM0K), RMASK))

    def refill_k_dyn(ds):
        if ds is not None:
            ds.need([("CLAIM",)])
        a("v_readfirstlane_b32 %s, %s" % (sr(sR), vr(vR)))
        a("s_add_u32 %s, %s, %d" % (sr(sJ), sr(sT), PD - 1))
        a("s_mov_b32 m0, %s" % sr(sM0K))
        a("s_add_u32 %s, %s, %s" % (sr(sR), sr(sR), sr(sDynBase)))
        a("s_lshl_b32 %s, %s, 14" % (sr(sR), sr(sR)))
        a("s_cmp_lt_u32 %s, %d" % (sr(sJ), S))
        a("s_cselect_b32 %s, %s, %s" % (sr(sOffK), sr(sStat), sr(sR)))
        dma_k()
        a("s_add_u32 %s, %s, %d" % (sr(sStat), sr(sStat), tstride))
        a("s_cmp_ge_u32 %s, %s" % (sr(sOffK), sr(srdK + 2)))
        a("s_cselect_b32 %s, %s, %s" % (sr(sJ), sr(sJ), sr(sEnd)))
        a("s_min_u32 %s, %s, %s" % (sr(sEnd), sr(sEnd), sr(sJ)))
        a("s_mov_b32 %s, %s" % (sr(sOffV), sr(sOffK)))
        a("s_add_u32 %s, %s, %d" % (sr(sM0K), sr(sM0K), U))
        a("s_and_b32 %s, %s, 0x%x" % (sr(sM0K), sr(sM0K), RMASK))

    a("s_mov_b32 %s, %s" % (sr(srdW), sr(sWs)))
    a("s_mov_b32 %s, %s" % (sr(srdW + 1), sr(sWs + 1)))
    for j in range(4):
        a("buffer_load_dwordx4 %s, v7, %s, %s offen offset:%d" % (vr(vQ + 4 * j, 4), sr(srdQ, 4), sr(sTmp2), j * 64))
    a("s_cmp_lg_u32 %s, 0" % sr(sInit))
    a("s_cbranch_scc1 L_nohdr")
    a("s_mov_b64 exec, 1")
    a("buffer_load_dword %s, off, %s, %s offset:4 sc1" % (vr(vH), sr(srdW, 4), sr(sCtl)))
    a("s_mov_b64 exec, -1")
    a.label("L_nohdr")

    a.label("L_fill")
    refill_v()
    refill_k_static()
    a("s_sub_u32 %s, %s, 1" % (sr(sT), sr(sT)))
    a("s_cmp_lg_u32 %s, 0" % sr(sT))
    a("s_cbranch_scc1 L_fill")
    if diag:
        stamp_real(2)
    a("v_lshlrev_b32 v6, 8, v2")
    a("v_or_b32 %s, v6, v4" % vr(vKa))
    for j in range(1, 4):
        a("v_xor_b32 %s, %d, %s" % (vr(vKa + j), j << 6, vr(vKa)))
    a("v_lshrrev_b32 v5, 2, v2")
    a("v_lshl_or_b32 v5, v3, 2, v5")
    a("v_and_b32 v6, 7, v5")
    a("v_lshlrev_b32 v6, 5, v6")
    a("v_lshl_or_b32 v6, v5, 8, v6")
    a("v_and_b32 v5, 3, v2")
    a("v_lshl_or_b32 v6, v5, 3, v6")
    for db in range(8):
        a("v_xor_b32 v5, %d, v6" % (db << 5))
        a("v_add_u32 %s, %d, v5" % (vr(vVa + db), VBASE + (N - 1) * U))
    for k in range(32):
        a("v_mov_b32 %s, 0" % vr(vO + k))
    for k in range(8):
        a("v_mov_b32 %s, 0" % vr(vP + k))
    a("v_mov_b32 %s, 0xff800000" % vr(vMC))
    a("v_mov_b32 %s, 0" % vr(vL))
    a("v_mov_b32 %s, 1" % vr(vC))
    a("v_mov_b32 %s, 0x%x" % (vr(vLq), LDSQ))
    a("s_mov_b32 %s, 0x%08x" % (sr(sC), f2u(cscale)))
    a("s_mov_b32 %s, 0x%08x" % (sr(sThr), f2u(thr)))
    a("s_mov_b32 %s, 0" % sr(sT))
    a("s_mov_b32 %s, %d" % (sr(sDNeg), -(N - 1) * U))
    a("s_mov_b32 %s, %d" % (sr(sDPos), U))
    a("s_mov_b32 %s, %d" % (sr(sDV), -(N - 1) * U))
    a("s_mov_b32 %s, %s" % (sr(srdO), sr(sOut)))
    a("s_mov_b32 %s, %s" % (sr(srdO + 1), sr(sOut + 1)))
    a("s_mov_b32 %s, 0x100000" % sr(srdO + 2))
    a("s_mov_b32 %s, 0x20000" % sr(srdO + 3))
    a("s_mov_b32 %s, %s" % (sr(srdD), sr(sDbg)))
    a("s_mov_b32 %s, %s" % (sr(srdD + 1), sr(sDbg + 1)))
    a("s_mov_b32 %s, 256" % sr(srdD + 2))
    a("s_mov_b32 %s, 0x20000" % sr(srdD + 3))
    a("s_lshl_b32 %s, %s, 2" % (sr(sDbgOff), sr(sGrp)))
    a("s_mov_b32 %s, 0" % sr(sEvt))
    a("s_mov_b32 %s, %d" % (sr(sEnd), 32 if not dyn else S + POOL + 1))
    a("s_mov_b32 %s, %s" % (sr(sStat), sr(sOffK)))
    a("s_sub_u32 %s, %d, %s" % (sr(sDynBase), 4 * S, sr(sSpl)))
    a("s_cmp_eq_u32 %s, 0" % sr(sW))
    a("s_cselect_b32 %s, %d, -1" % (sr(sDyn), S - PD - L))
    if diag:
        a("v_mov_b32 %s, 0" % vr(vDg1))
        a("v_mov_b32 %s, 0" % vr(vDg2))
        a("s_mov_b32 s60, 0")
        stamp_real(3)

    ds = DS(a)
    Sg = lambda k: vr(vS + k)
    X = lambda k: vr(vX + k)
    t = lambda k: vr(vT + k)

    def qk1(kb, j):
        ds.need([("K", kb, j)])
        a("v_mfma_f32_16x16x32_bf16 %s, %s, %s, %s" % (vr(vS + 4 * kb, 4), vr(vK + 16 * kb + 4 * j, 4), vr(vQ + 4 * j, 4),
                                                     "0" if j == 0 else vr(vS + 4 * kb, 4)))

    def vread(db, s):
        b = vV + 8 * db + 4 * s
        ds.issue("ds_read_b64_tr_b16 %s, %s offset:%d" % (vr(b, 2), vr(vVa + db), (2 * s) * 4096), ("V", db, s, 0))
        ds.issue("ds_read_b64_tr_b16 %s, %s offset:%d" % (vr(b + 2, 2), vr(vVa + db), (2 * s + 1) * 4096), ("V", db, s, 1))

    def pv1(db, s):
        ds.need([("V", db, s, 1)])
        a("v_mfma_f32_16x16x32_bf16 %s, %s, %s, %s" % (vr(vO + 4 * db, 4), vr(vV + 8 * db + 4 * s, 4), vr(vP + 4 * s, 4), vr(vO + 4 * db, 4)))

    def sm_fma(k):
        a("v_fma_f32 %s, %s, %s, -%s" % (X(k), Sg(k), sr(sC), vr(vMC)))

    def sm_exp(k):
        a("v_exp_f32 %s, %s" % (X(k), X(k)))

    def cvt(k):
        a("v_cvt_pk_bf16_f32 %s, %s, %s" % (vr(vP + k), X(2 * k), X(2 * k + 1)))

    a.label("L_loop")
    a("s_waitcnt vmcnt(%d)" % VM)
    if dyn:
        a("s_cmp_ge_u32 %s, %s" % (sr(sT), sr(sDyn)))
        a("s_cbranch_scc0 L_nb")
        a("s_sub_u32 %s, %s, %d" % (sr(sTmp), sr(sT), S - PD))
        a("s_lshl_b64 exec, 1, %s" % sr(sTmp))
        a("ds_write_b32 %s, %s" % (vr(vLq), vr(vC)))
        a("s_mov_b64 exec, -1")
        a("s_waitcnt lgkmcnt(0)")
        a.label("L_nb")
    a("s_barrier")
    if dyn:
        ds.issue("ds_read_b32 %s, %s" % (vr(vR), vr(vLq)), ("CLAIM",))
    a("s_cmp_eq_u32 %s, %s" % (sr(sT), sr(sEvt)))
    a("s_cbranch_scc1 L_svc")
    a.label("L_svcret")
    if dyn:
        a("s_cmp_ge_u32 %s, %s" % (sr(sT), sr(sDyn)))
        a("s_cbranch_scc0 L_na")
        a("s_sub_u32 %s, %s, %d" % (sr(sTmp), sr(sT), S - PD - L))
        a("s_lshl_b64 exec, 1, %s" % sr(sTmp))
        a("buffer_atomic_add %s, off, %s, %s sc0" % (vr(vC), sr(srdW, 4), sr(sCtl)))
        a("s_mov_b64 exec, -1")
        a.label("L_na")
    if diag:
        stamp_tile()
        a("s_cmp_lg_u32 %s, 0" % sr(sT))
        a("s_cbranch_scc1 L_nost")
        stamp_real(4)
        a.label("L_nost")
    a("s_add_u32 %s, %s, 1" % (sr(sT), sr(sT)))
    refill_k = (lambda: refill_k_dyn(ds)) if dyn else refill_k_static
    if nocompute:
        refill_v()
        refill_k()
        if dyn:
            a("v_xor_b32 %s, 4, %s" % (vr(vLq), vr(vLq)))
        ds.done = len(ds.q)
        ds.reset()
    else:
        units = [("K", 0, j) for j in range(4)] + [("K", 1, j) for j in range(4)] + [("V", db, 0) for db in range(8)] + \
                [("K", 2, j) for j in range(4)] + [("K", 3, j) for j in range(4)] + [("V", db, 1) for db in range(8)]

        def issue(u):
            if u >= 32:
                return
            kind, x, y = units[u]
            if kind == "K":
                ds.issue("ds_read_b128 %s, %s offset:%d" % (vr(vK + 16 * x + 4 * y, 4), vr(vKa + y), x * 4096), ("K", x, y))
            else:
                vread(x, y)

        def tag(u):
            kind, x, y = units[u]
            return ("K", x, y) if kind == "K" else ("V", x, y, 1)

        def mfma(u):
            kind, x, y = units[u]
            if u % 2 == 0:
                ds.need([tag(u + 1)])
            if kind == "K":
                qk1(x, y)
            else:
                pv1(x, y)

        def padd(d, x, y):
            a("v_add_f32 %s, %s, %s" % (d, x, y))

        D = DIST
        for u in range(D):
            issue(u)
        refill_v()
        a("s_and_b32 %s, %s, %d" % (sr(sTmp), sr(sT), N - 1))
        a("s_cselect_b32 %s, %s, %s" % (sr(sDK), sr(sDPos), sr(sDNeg)))
        fill = {i: [] for i in range(33)}
        F = lambda i, fn, *args: fill[i].append((fn, args))
        for h, base in ((0, 8), (1, 24)):
            k0 = 8 * h
            for m in range(8):
                F(base + m, sm_fma, k0 + m)
                F(base + m + 1, sm_exp, k0 + m)
        F(17, padd, t(0), X(0), X(1)); F(17, padd, t(1), X(2), X(3))
        F(18, padd, t(2), X(4), X(5)); F(18, padd, t(3), X(6), X(7))
        F(19, cvt, 0); F(19, cvt, 1)
        F(20, cvt, 2); F(20, cvt, 3)
        F(21, padd, t(0), t(0), t(1)); F(21, padd, t(2), t(2), t(3))
        F(22, padd, t(0), t(0), t(2))
        def kadd(j):
            a("v_add_u32 %s, %s, %s" % (vr(vKa + j), sr(sDK), vr(vKa + j)))
        def vadd(db):
            a("v_add_u32 %s, %s, %s" % (vr(vVa + db), sr(sDV), vr(vVa + db)))
        lastK = max(u for u in range(32) if units[u][0] == "K") - D
        for j in range(4):
            F(lastK + 1 + j // 2, kadd, j)
        for db in range(8):
            F(24 - D + db + 1 if 24 - D + db + 1 <= 32 else 32, vadd, db)
        F(kslot, refill_k)
        if dyn:
            F(kslot + 1, lambda: a("v_xor_b32 %s, 4, %s" % (vr(vLq), vr(vLq))))
        for u in range(32):
            mfma(u)
            issue(u + D)
            for fn, args in fill[u]:
                fn(*args)
        for fn, args in fill[32]:
            fn(*args)
        padd(t(1), X(8), X(9))
        padd(t(2), X(10), X(11))
        padd(t(3), X(12), X(13))
        cvt(4); cvt(5)
        padd(t(4), X(14), X(15))
        padd(t(0), t(0), t(1))
        padd(t(2), t(2), t(3))
        cvt(6)
        padd(t(0), t(0), t(4))
        cvt(7)
        padd(t(0), t(0), t(2))
        a("v_cmp_nge_f32 vcc, %s, %s" % (sr(sThr), t(0)))
        a("s_mov_b32 %s, %s" % (sr(sDV), sr(sDK)))
        a("s_cbranch_vccnz L_slow")
        a.label("L_back")
        a("v_add_f32 %s, %s, %s" % (vr(vL), vr(vL), t(0)))
        ds.reset()
    a("s_cmp_lt_u32 %s, %s" % (sr(sT), sr(sEnd)))
    a("s_cbranch_scc1 L_loop")

    RS = vK
    R = vV
    vTagV = 7
    sPubA, sPubB, sSel, sFF = 44, 45, 50, 51
    sInD, sInM = [46, 47, 92], [93, 94, 95]
    a("v_mov_b32 %s, %s" % (t(1), vr(vL)))
    a("v_mov_b32 %s, %s" % (vr(vTagV), sr(sTag)))
    a("v_permlane32_swap_b32 %s, %s" % (t(1), vr(vL)))
    a("s_lshl_b32 %s, %s, 2" % (sr(sTmp), sr(sGrp)))
    a("s_add_u32 %s, %s, %s" % (sr(sTmp2), sr(sTmp), sr(sW)))
    a("v_add_f32 %s, %s, %s" % (vr(vL), vr(vL), t(1)))
    a("s_lshl_b32 %s, %s, 2" % (sr(sTmp2), sr(sTmp2)))
    a("v_mov_b32 %s, %s" % (t(1), vr(vL)))
    a("s_add_u32 %s, %s, %s" % (sr(sTmp2), sr(sTmp2), sr(sSpl)))
    a("s_mul_i32 %s, %s, %d" % (sr(sPubA), sr(sTmp2), WSLOT))
    a("v_permlane16_swap_b32 %s, %s" % (t(1), vr(vL)))
    a("s_add_u32 %s, %s, 4096" % (sr(sPubB), sr(sPubA)))
    a("s_add_u32 %s, %s, %s" % (sr(sTmp2), sr(sTmp), sr(sSpl)))
    a("v_add_f32 %s, %s, %s" % (t(1), vr(vL), t(1)))
    a("v_mov_b32 %s, %s" % (t(0), vr(vMC)))
    a("v_mov_b32 %s, %s" % (t(2), sr(sTag)))
    a("v_mov_b32 %s, %s" % (t(3), sr(sTag)))
    a("s_mul_i32 %s, %s, %d" % (sr(sTmp2), sr(sTmp2), 4 * WSLOT))
    a("s_lshl_b32 %s, %s, 11" % (sr(sTmp), sr(sW)))
    for k in range(1, 4):
        a("s_add_u32 %s, %s, %d" % (sr(sR), sr(sSpl), k))
        a("s_and_b32 %s, %s, 3" % (sr(sR), sr(sR)))
        a("s_mul_i32 %s, %s, %d" % (sr(sR), sr(sR), WSLOT))
        a("s_add_u32 %s, %s, %s" % (sr(sInM[k - 1]), sr(sTmp2), sr(sR)))
        a("s_add_u32 %s, %s, %s" % (sr(sInD[k - 1]), sr(sInM[k - 1]), sr(sTmp)))
    a("v_lshlrev_b32 v2, 4, v0")
    a("v_and_b32 v5, 15, v0")
    a("v_lshlrev_b32 v3, 4, v5")
    a("v_add_u32 v3, 8192, v3")
    a("v_add_u32 v4, 0x%x, v2" % SELF)
    a("v_lshlrev_b32 v6, 3, v5")
    a("v_add_u32 v6, 0x%x, v6" % (SELF + 8192))
    a("s_mov_b32 %s, 0x07060500" % sr(sSel))
    a("s_mov_b32 %s, 0xff" % sr(sFF))
    a("s_waitcnt vmcnt(%d)" % (VM + 4))
    a("s_barrier")
    if not nocompute:
        for db in range(3):
            vread(db, 0); vread(db, 1)
        for db in range(8):
            pv1(db, 0); pv1(db, 1)
            if db + 3 < 8:
                vread(db + 3, 0); vread(db + 3, 1)
        ds.reset()

    if diag:
        stamp_real(5)
        a("s_add_u32 s62, %s, 63" % sr(sT))
        a("s_lshl_b64 exec, 1, s62")
        a("v_mov_b32 %s, s60" % vr(vDg1))
        a("s_mov_b64 exec, -1")
    a("s_cmp_eq_u32 %s, %s" % (sr(sW), sr(sSpl)))
    a("s_cbranch_scc1 L_self")
    for n in range(8):
        for k in range(4):
            a("v_perm_b32 %s, %s, %s, %s" % (vr(vO + 4 * n + k), vr(vO + 4 * n + k), vr(vTagV), sr(sSel)))
        a("buffer_store_dwordx4 %s, v2, %s, %s offen offset:%d sc1" % (vr(vO + 4 * n, 4), sr(srdW, 4), sr(sPubA if n < 4 else sPubB), (n & 3) * 1024))
    a("s_mov_b64 exec, 0xffff")
    a("buffer_store_dwordx4 %s, v3, %s, %s offen sc1" % (vr(vT, 4), sr(srdW, 4), sr(sPubA)))
    a("s_mov_b64 exec, -1")
    a("s_branch L_pubd")
    a.label("L_self")
    a("s_nop 7")
    for n in range(8):
        a("ds_write_b128 v4, %s offset:%d" % (vr(vO + 4 * n, 4), n * 1024))
    a("s_mov_b64 exec, 0xffff")
    a("ds_write_b64 v6, %s" % vr(vT, 2))
    a("s_mov_b64 exec, -1")
    a("s_waitcnt lgkmcnt(0)")
    a.label("L_pubd")
    if diag:
        stamp_real(6)
    sMask, sCnt = 48, 49
    a("s_mov_b32 %s, 14" % sr(sMask))
    a("s_mov_b32 %s, 0" % sr(sCnt))
    a("s_lshl_b32 %s, %s, 11" % (sr(sTmp), sr(sW)))
    a("v_add_u32 v4, %s, v4" % sr(sTmp))
    a.label("L_poll")
    for k in range(1, 4):
        a("s_bitcmp1_b32 %s, %d" % (sr(sMask), k))
        a("s_cbranch_scc0 L_pl%d" % k)
        rb = R + 12 * (k - 1)
        for e in range(2):
            a("buffer_load_dwordx4 %s, v2, %s, %s offen offset:%d sc1" % (vr(rb + 4 * e, 4), sr(srdW, 4), sr(sInD[k - 1]), e * 1024))
        a("buffer_load_dwordx4 %s, v3, %s, %s offen sc1" % (vr(rb + 8, 4), sr(srdW, 4), sr(sInM[k - 1])))
        a.label("L_pl%d" % k)
    a("s_cmp_lg_u32 %s, 0" % sr(sCnt))
    a("s_cbranch_scc1 L_pw")
    a("s_barrier")
    a("ds_read_b128 %s, v4" % vr(RS, 4))
    a("ds_read_b128 %s, v4 offset:1024" % vr(RS + 4, 4))
    a("ds_read_b64 %s, v6" % vr(RS + 8, 2))
    a("v_and_b32 v5, 15, v0")
    a("v_lshrrev_b32 v6, 4, v0")
    a("v_lshlrev_b32 v5, 8, v5")
    a("v_lshl_or_b32 v5, v6, 3, v5")
    a("s_lshl_b32 %s, %s, 6" % (sr(sTmp), sr(sW)))
    a("v_add_u32 v5, %s, v5" % sr(sTmp))
    a("s_lshl_b32 %s, %s, 14" % (sr(sTmp), sr(sGrp)))
    a("s_lshl_b32 %s, %s, 12" % (sr(sTmp2), sr(sSpl)))
    a("s_add_u32 %s, %s, %s" % (sr(sTmp), sr(sTmp), sr(sTmp2)))
    a.label("L_pw")
    a("s_add_u32 %s, %s, 1" % (sr(sCnt), sr(sCnt)))
    a("s_waitcnt vmcnt(0)")
    for k in range(1, 4):
        rb = R + 12 * (k - 1)
        for j in range(8):
            a("v_xor_b32 %s, %s, %s" % (vr(vX + j), vr(vTagV), vr(rb + j)))
        a("v_xor_b32 %s, %s, %s" % (vr(vX + 8), vr(vTagV), vr(rb + 10)))
        a("v_or3_b32 %s, %s, %s, %s" % (vr(vX), vr(vX), vr(vX + 1), vr(vX + 2)))
        a("v_or3_b32 %s, %s, %s, %s" % (vr(vX + 3), vr(vX + 3), vr(vX + 4), vr(vX + 5)))
        a("v_or3_b32 %s, %s, %s, %s" % (vr(vX), vr(vX), vr(vX + 6), vr(vX + 7)))
        a("v_or_b32 %s, %s, %s" % (vr(vX), vr(vX), vr(vX + 3)))
        a("v_and_or_b32 %s, %s, %s, %s" % (vr(vX), vr(vX), sr(sFF), vr(vX + 8)))
        a("v_cmp_ne_u32 vcc, 0, %s" % vr(vX))
        a("s_cbranch_vccnz L_pm%d" % k)
        a("s_bitset0_b32 %s, %d" % (sr(sMask), k))
        a.label("L_pm%d" % k)
    a("s_cmp_ge_u32 %s, 0x8000" % sr(sCnt))
    a("s_cbranch_scc1 L_polled")
    a("s_cmp_lg_u32 %s, 0" % sr(sMask))
    a("s_cbranch_scc1 L_poll")
    a.label("L_polled")
    if diag:
        stamp_real(7)
    a("s_waitcnt lgkmcnt(0)")
    mm = lambda k: vr(RS + 8) if k == 0 else vr(R + 12 * (k - 1) + 8)
    ll = lambda k: vr(RS + 9) if k == 0 else vr(R + 12 * (k - 1) + 9)
    dd = lambda k, j: vr(RS + j) if k == 0 else vr(R + 12 * (k - 1) + j)
    a("v_max3_f32 %s, %s, %s, %s" % (t(0), mm(0), mm(1), mm(2)))
    a("v_max_f32 %s, %s, %s" % (t(0), t(0), mm(3)))
    for k in range(4):
        a("v_sub_f32 %s, %s, %s" % (mm(k), mm(k), t(0)))
    for k in range(4):
        a("v_exp_f32 %s, %s" % (mm(k), mm(k)))
    a("v_mul_f32 %s, %s, %s" % (t(1), mm(0), ll(0)))
    for k in range(1, 4):
        a("v_fma_f32 %s, %s, %s, %s" % (t(1), mm(k), ll(k), t(1)))
    a("v_rcp_f32 %s, %s" % (t(1), t(1)))
    for j in range(8):
        a("v_mul_f32 %s, %s, %s" % (vr(vS + j), mm(0), dd(0, j)))
    for k in range(1, 4):
        for j in range(8):
            a("v_fma_f32 %s, %s, %s, %s" % (vr(vS + j), mm(k), dd(k, j), vr(vS + j)))
    for j in range(8):
        a("v_mul_f32 %s, %s, %s" % (vr(vS + j), t(1), vr(vS + j)))
    for k in range(4):
        a("v_cvt_pk_bf16_f32 %s, %s, %s" % (vr(vP + k), vr(vS + 2 * k), vr(vS + 2 * k + 1)))
    for e in range(2):
        a("buffer_store_dwordx2 %s, v5, %s, %s offen offset:%d%s" % (vr(vP + 2 * e, 2), sr(srdO, 4), sr(sTmp), e * 32, (" " + opol) if opol else ""))
    if diag:
        stamp_real(8)
        a("s_waitcnt lgkmcnt(0)")
        for idx in range(9):
            a("s_lshl_b64 exec, 1, %d" % idx)
            a("v_mov_b32 %s, s%d" % (vr(vDg2), 64 + 2 * idx))
        a("s_lshl_b64 exec, 1, 12")
        a("v_mov_b32 %s, %s" % (vr(vDg2), sr(sT)))
        a("s_lshl_b64 exec, 1, 13")
        a("v_mov_b32 %s, %s" % (vr(vDg2), sr(sCnt)))
        a("s_getreg_b32 s60, hwreg(HW_REG_XCC_ID)")
        a("s_lshl_b64 exec, 1, 14")
        a("v_mov_b32 %s, s60" % vr(vDg2))
        a("s_getreg_b32 s60, hwreg(HW_REG_HW_ID)")
        a("s_lshl_b64 exec, 1, 15")
        a("v_mov_b32 %s, s60" % vr(vDg2))
        a("s_mov_b64 exec, -1")
        a("s_lshl_b32 s60, s2, 2")
        a("s_add_u32 s60, s60, %s" % sr(sW))
        a("s_lshl_b32 s60, s60, 9")
        a("s_add_u32 s60, s60, 0x1000000")
        a("v_lshlrev_b32 v1, 2, v0")
        a("buffer_store_dword %s, v1, %s, s60 offen" % (vr(vDg1), sr(srdW, 4)))
        a("buffer_store_dword %s, v1, %s, s60 offen offset:256" % (vr(vDg2), sr(srdW, 4)))
    a.label("L_done")
    a("s_endpgm")

    a.label("L_svc")
    a("s_cmp_eq_u32 %s, 0" % sr(sT))
    a("s_cbranch_scc1 L_svcB")
    a("s_cmp_eq_u32 %s, 3" % sr(sT))
    a("s_cbranch_scc1 L_svcC")
    a("s_cmp_eq_u32 %s, %d" % (sr(sT), D0))
    a("s_cbranch_scc1 L_svcD")
    a("s_mov_b32 %s, -1" % sr(sEvt))
    a("v_readfirstlane_b32 %s, %s" % (sr(sTag), vr(vH)))
    a("s_mov_b32 %s, 0" % sr(sTmp))
    a("s_cmp_lg_u32 %s, 0" % sr(sTag))
    a("s_cbranch_scc1 L_svcret")
    a.label("L_spin")
    a("buffer_load_dword %s, off, %s, %s sc1" % (vr(vH), sr(srdD, 4), sr(sDbgOff)))
    a("s_add_u32 %s, %s, 1" % (sr(sTmp), sr(sTmp)))
    a("s_waitcnt vmcnt(0)")
    a("v_readfirstlane_b32 %s, %s" % (sr(sTag), vr(vH)))
    a("s_cmp_ge_u32 %s, 0x8000" % sr(sTmp))
    a("s_cbranch_scc1 L_svcret")
    a("s_cmp_eq_u32 %s, 0" % sr(sTag))
    a("s_cbranch_scc1 L_spin")
    a("s_branch L_svcret")
    a.label("L_svcB")
    a("s_mov_b32 %s, 3" % sr(sEvt))
    a("s_cmp_lg_u32 %s, 0" % sr(sInit))
    a("s_cbranch_scc1 L_svcret")
    a("v_readfirstlane_b32 %s, %s" % (sr(sTag), vr(vH)))
    a("v_mov_b32 %s, 0" % vr(vPair))
    a("s_add_u32 %s, %s, 1" % (sr(sTag), sr(sTag)))
    a("s_addc_u32 %s, %s, 0" % (sr(sTag), sr(sTag)))
    a("v_mov_b32 %s, %s" % (vr(vPair + 1), sr(sTag)))
    a("s_mov_b64 exec, 1")
    a("buffer_store_dwordx2 %s, off, %s, %s sc1" % (vr(vPair, 2), sr(srdW, 4), sr(sCtl)))
    a("s_mov_b64 exec, -1")
    a("s_branch L_svcret")
    a.label("L_svcC")
    a("s_mov_b32 %s, %d" % (sr(sEvt), D0))
    a("s_cmp_lg_u32 %s, 0" % sr(sInit))
    a("s_cbranch_scc1 L_svcret")
    a("s_mov_b64 exec, 1")
    a("buffer_store_dword %s, off, %s, %s sc1" % (vr(vPair + 1), sr(srdD, 4), sr(sDbgOff)))
    a("s_mov_b64 exec, -1")
    a("s_branch L_svcret")
    a.label("L_svcD")
    a("s_mov_b32 %s, %d" % (sr(sEvt), D0 + 3))
    a("s_mov_b64 exec, 1")
    a("buffer_load_dword %s, off, %s, %s sc1" % (vr(vH), sr(srdD, 4), sr(sDbgOff)))
    a("s_mov_b64 exec, -1")
    a("s_branch L_svcret")

    if not nocompute:
        a.label("L_slow")
        a("s_nop 7")
        a("v_max3_f32 %s, %s, %s, %s" % (t(0), Sg(0), Sg(1), Sg(2)))
        a("v_max3_f32 %s, %s, %s, %s" % (t(1), Sg(3), Sg(4), Sg(5)))
        a("v_max3_f32 %s, %s, %s, %s" % (t(2), Sg(6), Sg(7), Sg(8)))
        a("v_max3_f32 %s, %s, %s, %s" % (t(0), t(0), Sg(9), Sg(10)))
        a("v_max3_f32 %s, %s, %s, %s" % (t(1), t(1), Sg(11), Sg(12)))
        a("v_max3_f32 %s, %s, %s, %s" % (t(2), t(2), Sg(13), Sg(14)))
        a("v_max3_f32 %s, %s, %s, %s" % (t(0), t(0), t(1), Sg(15)))
        a("v_max_f32 %s, %s, %s" % (t(0), t(0), t(2)))
        a("v_mov_b32 %s, %s" % (t(1), t(0)))
        a("v_permlane32_swap_b32 %s, %s" % (t(1), t(0)))
        a("v_max_f32 %s, %s, %s" % (t(0), t(0), t(1)))
        a("v_mov_b32 %s, %s" % (t(1), t(0)))
        a("v_permlane16_swap_b32 %s, %s" % (t(1), t(0)))
        a("v_max_f32 %s, %s, %s" % (t(0), t(0), t(1)))
        a("v_mul_f32 %s, %s, %s" % (t(0), sr(sC), t(0)))
        a("v_max_f32 %s, %s, %s" % (t(0), t(0), vr(vMC)))
        a("v_sub_f32 %s, %s, %s" % (t(1), vr(vMC), t(0)))
        a("v_mov_b32 %s, %s" % (vr(vMC), t(0)))
        a("v_exp_f32 %s, %s" % (vr(vAl), t(1)))
        for k in range(16):
            sm_fma(k)
        for k in range(16):
            sm_exp(k)
        a("v_mul_f32 %s, %s, %s" % (vr(vL), vr(vAl), vr(vL)))
        for k in range(32):
            a("v_mul_f32 %s, %s, %s" % (vr(vO + k), vr(vAl), vr(vO + k)))
        a("v_add_f32 %s, %s, %s" % (t(0), X(0), X(1)))
        for k in range(2, 16):
            a("v_add_f32 %s, %s, %s" % (t(0), t(0), X(k)))
        for k in range(8):
            cvt(k)
        a("s_branch L_back")

    loops = [("L_loop", "s_cbranch_scc1 L_loop"), ("L_poll", "s_cbranch_scc1 L_poll"), ("L_fill", "s_cbranch_scc1 L_fill"),
             ("L_spin", "s_cbranch_scc1 L_spin")]
    body, nadd = pad_hazards(a.lines, loops=loops)
    out = []
    out.append("; params: N=%d pol=%r wgmap=%d dyn=%d S=%d diag=%d nocompute=%d" % (N, pol, wgmap, dyn, S, diag, nocompute))
    out.append("; @launch grid=(256,1,1) block=(256,1,1) lds=%d" % LDS)
    out.append('.amdgcn_target "amdgcn-amd-amdhsa--gfx950"')
    out.append(".text")
    out.append(".globl %s_kernel" % NAME)
    out.append(".p2align 8")
    out.append(".type %s_kernel,@function" % NAME)
    out.append("%s_kernel:" % NAME)
    for ln in body:
        out.append(ln if ln.endswith(":") else "    " + ln)
    out.append('.section .rodata,"a"')
    out.append(".p2align 6")
    out.append(".amdhsa_kernel %s_kernel" % NAME)
    out.append("  .amdhsa_next_free_vgpr 256")
    out.append("  .amdhsa_next_free_sgpr 96")
    out.append("  .amdhsa_accum_offset 256")
    out.append("  .amdhsa_group_segment_fixed_size 0")
    out.append("  .amdhsa_kernarg_size 48")
    out.append("  .amdhsa_user_sgpr_count 2")
    out.append("  .amdhsa_user_sgpr_kernarg_segment_ptr 1")
    out.append("  .amdhsa_system_sgpr_workgroup_id_x 1")
    out.append(".end_amdhsa_kernel")
    return "\n".join(out) + "\n", nadd


if __name__ == "__main__":
    ap = argparse.ArgumentParser()
    ap.add_argument("-o", default="cdna_kernels/%s.s" % NAME)
    ap.add_argument("--pol", default="nt")
    ap.add_argument("--wgmap", type=int, default=2)
    ap.add_argument("--diag", type=int, default=0)
    ap.add_argument("--nocompute", type=int, default=0)
    ap.add_argument("--polv", default=None)
    ap.add_argument("--dist", type=int, default=7)
    ap.add_argument("--dyn", type=int, default=1)
    ap.add_argument("--S", type=int, default=20)
    ap.add_argument("--kslot", type=int, default=2)
    ap.add_argument("--pollall", type=int, default=0)
    ap.add_argument("--xg", type=int, default=3)
    ap.add_argument("--opol", default="")
    ap.add_argument("--PD", type=int, default=3)
    args = ap.parse_args()
    txt, nadd = gen(pol=args.pol, wgmap=args.wgmap, diag=args.diag, nocompute=args.nocompute, DIST=args.dist, polv=args.polv,
                    dyn=args.dyn, S=args.S, kslot=args.kslot, pollall=args.pollall, xg=args.xg, opol=args.opol, PD=args.PD)
    open(args.o, "w").write(txt)
    print("wrote", args.o, "nops inserted:", nadd, "lines:", txt.count("\n"))
```
